```python
import torch

def _softmax(x, axis=-1):
    return torch.softmax(x, dim=axis)
def _gelu(x):
    return torch.nn.functional.gelu(x, approximate="tanh")
def _silu(x):
    return torch.nn.functional.silu(x)
def _sigmoid(x):
    return torch.sigmoid(x)
def _layernorm(x, axis=-1, eps=1e-5):
    m = x.mean(dim=axis, keepdim=True)
    v = x.var(dim=axis, keepdim=True, unbiased=False)
    return (x - m) / torch.sqrt(v + eps)
def _scatter_add(tgt, idx, src, axis=0):
    return tgt.clone().index_add_(axis, idx, src)
def _segment_sum(src, seg, n):
    out = torch.zeros((n,) + src.shape[1:], dtype=src.dtype)
    return out.index_add_(0, seg, src)
def _pad(x, pw):
    flat = tuple(v for pair in reversed(pw) for v in pair)
    return torch.nn.functional.pad(x, flat)

kernel_name = 'concat_heads__spectral_gfnet__ssm_conv_s4__prompt'

def setup_inputs():

    _w = (lambda a: (lambda t: t.to(torch.bfloat16) if t.is_floating_point() else t)(torch.as_tensor(a)))
    def _A_setup():
        B, S, D = 1, 2048, 640
        Df = D // 2 + 1
        return {
            "x": _w((lambda *s: torch.randn(*s, dtype=torch.bfloat16) * 0.05)(B, S, D)),
            "w_r": _w((lambda *s: torch.randn(*s, dtype=torch.bfloat16) * 0.8)(S, Df) * 0.02),
            "w_i": _w((lambda *s: torch.randn(*s, dtype=torch.bfloat16) * 1.6)(S, Df) * 0.02),
        }
    _A_in = _A_setup()

    def _B_setup():
        B, L, D, N = 1, 2048, 640, 128
        A_re = -(lambda _x: torch.exp(torch.as_tensor(_x)))((lambda *s: torch.randn(*s, dtype=torch.bfloat16) * 3.2)(D, N))
        A_im = torch.pi * (lambda *s: torch.randn(*s, dtype=torch.bfloat16) * 0.05)(D, N)
        B_re = (lambda *s: torch.randn(*s, dtype=torch.bfloat16) * 0.1)(D, N)
        B_im = (lambda *s: torch.randn(*s, dtype=torch.bfloat16) * 0.1)(D, N)
        C_re = (lambda *s: torch.randn(*s, dtype=torch.bfloat16) * 0.1)(D, N)
        C_im = (lambda *s: torch.randn(*s, dtype=torch.bfloat16) * 0.1)(D, N)
        log_dt = (lambda *s: torch.randn(*s, dtype=torch.bfloat16) * 0.05)(D) * 0.5 - 4.0
        Dskip = (lambda *s: torch.randn(*s, dtype=torch.bfloat16) * 0.05)(D)
        return {
            "u": _w((lambda *s: torch.randn(*s, dtype=torch.bfloat16) * 0.05)(B, L, D)),
            "A_re": _w(A_re),
            "A_im": _w(A_im),
            "B_re": _w(B_re),
            "B_im": _w(B_im),
            "C_re": _w(C_re),
            "C_im": _w(C_im),
            "log_dt": _w(log_dt),
            "Dskip": _w(Dskip),
        }
    _B_in = _B_setup()

    return {
        "A_x": _A_in["x"],
        "A_w_r": _A_in["w_r"],
        "A_w_i": _A_in["w_i"],
        "B_u": _B_in["u"],
        "B_A_re": _B_in["A_re"],
        "B_A_im": _B_in["A_im"],
        "B_B_re": _B_in["B_re"],
        "B_B_im": _B_in["B_im"],
        "B_C_re": _B_in["C_re"],
        "B_C_im": _B_in["C_im"],
        "B_log_dt": _B_in["log_dt"],
        "B_Dskip": _B_in["Dskip"],
    }

def reference(A_x, A_w_r, A_w_i, B_u, B_A_re, B_A_im, B_B_re, B_B_im, B_C_re, B_C_im, B_log_dt, B_Dskip):
    def _A_ref(x, w_r, w_i):
        B, S, D = x.shape
        X = (lambda x, axes=(-2,-1): torch.fft.rfft2(x.float(), dim=axes))(x, axes=(-2, -1))
        W = w_r + 1j * w_i
        X = X * W
        y = (lambda x, s, axes=(-2,-1): torch.fft.irfft2(x, s=s, dim=axes).to(torch.bfloat16))(X, (S, D), axes=(-2, -1))
        return y

    def _B_ref(u, A_re, A_im, B_re, B_im, C_re, C_im, log_dt, Dskip):
        Bsz, L, D = u.shape
        dt = torch.exp(log_dt)[:, None]
        A = A_re + 1j * A_im
        Bc = B_re + 1j * B_im
        Cc = C_re + 1j * C_im
        logdA = dt * A
        dB = dt * Bc
        l = (lambda x, dt: x.to(dt))(torch.arange(L), A_re.dtype)
        P = torch.exp(logdA[:, :, None] * l[None, None, :])
        K = torch.einsum("dn,dnl,dn->dl", Cc, P, dB).real
        L2 = 2 * L
        Kp = _pad(K, ((0, 0), (0, L)))
        up = (lambda x, *d: x.permute(*d))(u, 0, 2, 1)
        up = _pad(up, ((0, 0), (0, 0), (0, L)))
        Kf = (lambda x, axes=(-2,-1): torch.fft.rfft2(x.float(), dim=axes))(Kp[:, None, :], axes=(-2, -1))
        Uf = (lambda x, axes=(-2,-1): torch.fft.rfft2(x.float(), dim=axes))(up[:, :, None, :], axes=(-2, -1))
        Yf = Uf * Kf[None, :, :, :]
        y = (lambda x, s, axes=(-2,-1): torch.fft.irfft2(x, s=s, dim=axes).to(torch.bfloat16))(Yf, (1, L2), axes=(-2, -1))[:, :, 0, :L]
        y = (lambda x, *d: x.permute(*d))(y, 0, 2, 1) + u * Dskip[None, None, :]
        return y

    a = _A_ref(A_x, A_w_r, A_w_i)
    b = _B_ref(B_u, B_A_re, B_A_im, B_B_re, B_B_im, B_C_re, B_C_im, B_log_dt, B_Dskip)
    return torch.concatenate([a, b], axis=-1)
```

```python
import re, struct

def f2u(f): return struct.unpack("<I", struct.pack("<f", f))[0]
def fl(f): return "0x%08x" % f2u(f)

TRANS = ("v_exp_f32", "v_log_f32", "v_rcp_f32", "v_rsq_f32", "v_sqrt_f32", "v_sin_f32", "v_cos_f32")
_reg = re.compile(r"^-?\|?(v|s|a)(\d+)\|?$|^-?(v|s|a)\[(\d+):(\d+)\]$")

def regs_of(op):
    op = op.strip()
    if op in ("vcc",): return [("s", "vcc")]
    if op in ("exec",): return [("s", "exec")]
    m = _reg.match(op)
    if not m: return []
    if m.group(1): return [(m.group(1), int(m.group(2)))]
    return [(m.group(3), i) for i in range(int(m.group(4)), int(m.group(5)) + 1)]

class Ins:
    def __init__(self, text):
        self.text = text
        t = text.split(";")[0].strip()
        self.label = t.endswith(":")
        self.mn = t.split()[0] if t else ""
        rest = t[len(self.mn):].strip()
        ops = []
        depth = 0; cur = ""
        for ch in rest:
            if ch == "[": depth += 1
            if ch == "]": depth -= 1
            if ch == "," and depth == 0: ops.append(cur.strip()); cur = ""
            else: cur += ch
        if cur.strip():
            parts = cur.strip().split()
            ops.append(parts[0])
        self.ops = ops
        mn = self.mn
        self.mfma = mn.startswith("v_mfma")
        self.valu = mn.startswith("v_") and not self.mfma
        self.trans = mn in TRANS
        self.ds = mn.startswith("ds_")
        self.vmem = mn.startswith("buffer_") or mn.startswith("global_")
        self.salu = mn.startswith("s_")
        self.w = []; self.r = []
        R = [regs_of(o) for o in ops]
        flat = lambda L: [x for l in L for x in l]
        if self.label or not mn: return
        if self.mfma:
            self.w = R[0]; self.rA = R[1] + R[2]; self.rC = R[3] if len(R) > 3 else []; self.r = self.rA + self.rC
            self.passes = 4 if "16x16x32" in mn else 8
        elif self.valu:
            if mn.startswith("v_cmp"):
                self.w = R[0]; self.r = flat(R[1:])
            elif mn in ("v_readfirstlane_b32", "v_readlane_b32"):
                self.w = R[0]; self.r = flat(R[1:])
            elif mn.startswith("v_add_co") or mn.startswith("v_addc_co"):
                self.w = R[0] + R[1]; self.r = flat(R[2:])
            else:
                self.w = R[0]; self.r = flat(R[1:])
                if mn.startswith("v_fmac") or mn.startswith("v_permlane"): self.r += R[0]
                if mn.startswith("v_permlane"): self.w = R[0] + R[1]
                if mn == "v_cndmask_b32" and len(ops) == 3: self.r += [("s", "vcc")]
        elif self.ds:
            if mn.startswith("ds_read") or mn.startswith("ds_bpermute"):
                self.w = R[0]; self.r = flat(R[1:])
            else:
                self.r = flat(R)
        elif self.vmem:
            if "load" in mn: self.w = R[0]; self.r = flat(R[1:])
            else: self.r = flat(R); self.sdata = (R[0] if mn.startswith("buffer_") else R[1])
            self.wide = ("x3" in mn or "x4" in mn) and "store" in mn
        elif self.salu:
            if mn.startswith("s_cmp") or mn.startswith("s_cbranch") or mn in ("s_branch", "s_barrier", "s_waitcnt", "s_nop", "s_sleep", "s_endpgm", "s_setprio"):
                self.r = flat(R)
            else:
                self.w = R[0] if R else []; self.r = flat(R[1:])
    def states(self):
        if self.label or not self.mn: return 0
        if self.mn == "s_nop": return int(self.ops[0]) + 1
        return 1

def need(prod, cons):
    n = 0
    pw = set(prod.w)
    cr = set(cons.r); cw = set(cons.w)
    if prod.mfma:
        P = prod.passes
        full = {4: 8, 8: 12}[P]
        if cons.mfma:
            if pw & set(cons.rA): n = max(n, full)
            if pw & set(cons.rC):
                if not (cons.rC == prod.w and cons.passes == prod.passes): n = max(n, {4: 6, 8: 10}[P])
            elif pw & cw: n = max(n, full)
        else:
            if pw & (cr | cw): n = max(n, full)
            if cons.valu and set(prod.rC) & cw: n = max(n, {4: 3, 8: 7}[P])
        return n
    if prod.valu:
        vw = {x for x in pw if x[0] == "v"}
        sw = {x for x in pw if x[0] == "s"}
        if cons.mfma and vw & cr: n = max(n, 2)
        if prod.trans and cons.valu and not cons.trans and vw & cr: n = max(n, 1)
        if prod.trans and (cons.ds or cons.vmem) and vw & cr: n = max(n, 1)
        if cons.mn in ("v_readfirstlane_b32", "v_readlane_b32") and vw & cr: n = max(n, 1)
        if cons.mn.startswith("v_permlane") and vw & cr: n = max(n, 2)
        if "dpp" in cons.text and vw & cr: n = max(n, 2)
        if sw:
            if cons.valu and sw & cr: n = max(n, 2)
            if cons.vmem and sw & cr: n = max(n, 5)
            if cons.salu and sw & cr: n = max(n, 1)
            if cons.mn.startswith("s_cbranch_vcc") and ("s", "vcc") in sw: n = max(n, 1)
    if prod.vmem and getattr(prod, "wide", False):
        if set(prod.sdata) & cw: n = max(n, 2 if cons.valu else 1)
    return n

class Asm:
    def __init__(self):
        self.lines = []
    def __call__(self, text):
        for l in text.split("\n"):
            l = l.strip()
            if l: self.lines.append(l)
    def label(self, name): self.lines.append(name + ":")
    def finalize(self):
        out = []
        hist = []
        nnop = 0
        for l in self.lines:
            if l.startswith(";") or l.startswith("."):
                out.append(l); continue
            ins = Ins(l)
            if ins.label:
                out.append(l); continue
            req = 0; dist = 0
            isbr = (ins.mn.startswith("s_cbranch") or ins.mn == "s_branch") and "nohaz" not in l
            for p in reversed(hist):
                if isbr:
                    wc = 0
                    if p.mfma: wc = {4: 8, 8: 12}[p.passes]
                    elif p.valu: wc = 5 if any(x[0] == "s" for x in p.w) else 2
                    elif p.vmem and getattr(p, "wide", False): wc = 2
                    if wc - 1 > dist: req = max(req, wc - 1 - dist)
                r = need(p, ins)
                if r > dist: req = max(req, r - dist)
                dist += p.states()
                if dist > 20: break
            while req > 0:
                k = min(req, 16)
                out.append(f"    s_nop {k-1}"); hist.append(Ins(f"s_nop {k-1}")); req -= k; nnop += 1
            out.append("    " + l)
            hist.append(ins); hist = hist[-24:]
        self.nnop = nnop
        return "\n".join(out) + "\n"
```

```python
import sys, math
from asmlib import Asm, fl
NAME = "concat_heads__spectral_gfnet__ssm_conv_s4__prompt_kernel"
DEBUG = "--debug" in sys.argv
RHO_SPLIT = 3
POLL_MAX = 200000

ZB, VB, UTB, YTB = 0x100000, 0x500000, 0x900000, 0xD00000
ZS = 14848
CS_ = 5504
STAMPB = 0x2000000
KDUMP = 0x2100000
TROW = 528; TSZ = 57*TROW
L_T = 0
L_KC = 0; KCS = 4160; KCH = 4*KCS
L_U = 49920; US = 4640
L_W = 65536
L_ZIN = 98304
L_X = 98304; XS = 1312
L_T1 = 108800
L_NAT = 125184
L_KD = 136000; KDS = 1552
L_Y = 140704; YS = 4128
L_PL = 0
L_T2 = 32768
LDS_TOTAL = 153088
assert L_KD + 3*KDS <= L_Y and L_Y + 3*YS <= LDS_TOTAL

a = Asm()
SC = "sc0 sc1"

sX, sWR, sWI, sU, sARE, sAIM, sBRE, sBIM, sCRE, sCIM, sLDT, sDSK, sOUT, sDBG, sWS = [4+2*i for i in range(15)]
def sp(r): return f"s[{r}:{r+1}]"
def s4(r): return f"s[{r}:{r+3}]"
SRD_U, SRD_WR, SRD_WI, SRD_OUT, SRD_WS, SRD_CODE = 36, 40, 44, 48, 52, 56
sTAG, sWAVE, sCH0, sNCH, sR, sMIR, sUI, sTB, sCG = 60, 61, 62, 63, 64, 65, 66, 67, 68
sLD, sDS = 70, 72
sCNT, sT0, sT1, sT2, sT3 = 74, 75, 76, 77, 78
sEX = 80
sEX2 = 82
sPOLL = 84
sSTAMP = 86
vTID, vLANE, vN, vG = 0, 1, 2, 3
vT0, vT1, vT2, vT3, vT4, vT5 = 4, 5, 6, 7, 8, 9
vPAR = 10
vUD = 28
vXD = 36
vPF = 41
vEA = 42
vNATA = 53
vT1W = 55
vT1R = 57
vUTO = 58
vKT = 59
vDT = 60
vSTAMP = 63
vB = 64
vTW = 104
vB2 = 120
vTMP = 152
def v4(r): return f"v[{r}:{r+3}]"
def v2(r): return f"v[{r}:{r+1}]"
def v3(r): return f"v[{r}:{r+2}]"

nstamp = [0]
def stamp():
    if not DEBUG: return
    i = nstamp[0]; nstamp[0] += 1
    a(f"s_memrealtime s[86:87]")
    a("s_waitcnt lgkmcnt(0)")
    a(f"v_writelane_b32 v{vSTAMP}, s86, {i}")

lab = [0]
def newlab(p):
    lab[0] += 1
    return f"L_{p}_{lab[0]}"

def srd(r, ptr, nbytes):
    a(f"s_mov_b32 s{r}, s{ptr}\ns_mov_b32 s{r+1}, s{ptr+1}\ns_mov_b32 s{r+2}, {nbytes}\ns_mov_b32 s{r+3}, 0x00020000")

def sincos(s, c, th):
    a(f"v_sin_f32 v{s}, v{th}\nv_cos_f32 v{c}, v{th}")

def cvtpk(d, lo, hi): a(f"v_cvt_pk_bf16_f32 v{d}, {lo}, {hi}")

def prologue():
    a.label(NAME)
    a(f"s_getpc_b64 s[{SRD_CODE}:{SRD_CODE+1}]")
    a(f"s_cmp_ge_u32 s2, 256\ns_cbranch_scc1 L_end")
    a(f"s_load_dwordx16 s[4:19], s[0:1], 0\ns_load_dwordx8 s[20:27], s[0:1], 64\ns_load_dwordx4 s[28:31], s[0:1], 96\ns_load_dwordx2 s[32:33], s[0:1], 112")
    a(f"s_mov_b32 s{SRD_CODE+2}, L_end-{NAME}\ns_mov_b32 s{SRD_CODE+3}, 0x00020000")
    a(f"v_lshlrev_b32 v{vT0}, 6, v0")
    a(f"buffer_load_dword v{vPF}, v{vT0}, {s4(SRD_CODE)}, 0 offen")
    a(f"s_mov_b32 s{sT0}, 32768\nbuffer_load_dword v{vPF}, v{vT0}, {s4(SRD_CODE)}, s{sT0} offen")
    if DEBUG: a(f"v_mov_b32 v{vSTAMP}, 0")
    a(f"v_and_b32 v{vLANE}, 63, v0\nv_and_b32 v{vN}, 15, v0\nv_bfe_u32 v{vG}, v0, 4, 2\nv_lshrrev_b32 v{vT1}, 6, v0")
    a(f"v_readfirstlane_b32 s{sWAVE}, v{vT1}")
    a(f"""s_lshl_b32 s{sCH0}, s2, 1
s_mov_b32 s{sNCH}, 2
s_sub_u32 s{sT0}, s2, 116
s_mul_i32 s{sT0}, s{sT0}, 3
s_add_u32 s{sT0}, s{sT0}, 232
s_cmp_ge_u32 s2, 116
s_cselect_b32 s{sCH0}, s{sT0}, s{sCH0}
s_cselect_b32 s{sNCH}, 3, s{sNCH}
s_cmp_ge_u32 s2, 252
s_cselect_b32 s{sCH0}, 0, s{sCH0}
s_cselect_b32 s{sNCH}, 0, s{sNCH}""")
    a(f"""s_mul_i32 s{sTB}, s2, 6554
s_lshr_b32 s{sTB}, s{sTB}, 16
s_mul_i32 s{sT0}, s{sTB}, 10
s_sub_u32 s{sCG}, s2, s{sT0}""")
    a(f"v_and_b32 v{vT1}, 127, v0\nv_lshlrev_b32 v{vT1}, 1, v{vT1}\ns_lshl_b32 s{sT0}, s{sCH0}, 8\nv_add_u32 v{vT1}, s{sT0}, v{vT1}")
    a(f"s_lshl_b32 s{sT0}, s{sWAVE}, 8\ns_add_u32 s{sT0}, s{sT0}, s2\ns_mul_i32 s{sT0}, s{sT0}, 1280")
    a(f"v_lshlrev_b32 v{vT2}, 4, v{vLANE}\nv_add_u32 v{vT2}, s{sT0}, v{vT2}")
    a(f"v_lshlrev_b32 v{vT3}, 2, v{vLANE}\nv_add_u32 v{vT3}, s{sT0}, v{vT3}")
    a(f"s_mul_i32 s{sT0}, s{sTB}, {96*1280}\ns_lshl_b32 s{sT1}, s{sCG}, 7\ns_add_u32 s{sT0}, s{sT0}, s{sT1}")
    a(f"s_cmp_ge_u32 s2, 220\ns_cselect_b32 s{sT0}, 0x40000000, s{sT0}")
    a(f"v_lshrrev_b32 v{vT4}, 3, v0\nv_mul_u32_u24 v{vT4}, 1280, v{vT4}\nv_and_b32 v{vT5}, 7, v0\nv_lshlrev_b32 v{vT5}, 4, v{vT5}\nv_add3_u32 v{vT4}, v{vT4}, v{vT5}, s{sT0}")
    a(f"s_cmp_ge_u32 s{sWAVE}, 4\ns_cselect_b32 s{sT2}, 0x40000000, {64*1280}")
    a("s_waitcnt lgkmcnt(0)")
    a(f"s_load_dword s{sTAG}, {sp(sWS)}, 0")
    a(f"s_and_b32 s{sT0}, s{sCH0}, 0xfffffffe\ns_lshl_b32 s{sT0}, s{sT0}, 1")
    a(f"s_load_dwordx2 {sp(sLD)}, {sp(sLDT)}, s{sT0}\ns_load_dwordx2 {sp(sDS)}, {sp(sDSK)}, s{sT0}")
    for c in range(3):
        a(f"global_load_ushort v{vPAR+6*c}, v{vT1}, {sp(sARE)} offset:{256*c} nt")
        a(f"global_load_ushort v{vPAR+6*c+1}, v{vT1}, {sp(sAIM)} offset:{256*c} nt")
    l = newlab("nobc")
    a(f"s_cmp_ge_u32 s{sWAVE}, 2\ns_cbranch_scc1 {l}")
    for c in range(3):
        for j, p in enumerate((sBRE, sBIM, sCRE, sCIM)):
            a(f"global_load_ushort v{vPAR+6*c+2+j}, v{vT1}, {sp(p)} offset:{256*c} nt")
    a.label(l)
    srd(SRD_U, sU, 2048*1280)
    a(f"buffer_load_dwordx4 {v4(vUD)}, v{vT4}, {s4(SRD_U)}, 0 offen nt")
    a(f"buffer_load_dwordx4 {v4(vUD+4)}, v{vT4}, {s4(SRD_U)}, s{sT2} offen nt")
    a(f"global_load_dwordx4 {v4(vXD)}, v{vT2}, {sp(sX)} nt")
    a(f"global_load_dword v{vXD+4}, v{vT3}, {sp(sX)} offset:1024 nt")
    srd(SRD_WS, sWS, 0x10000000)
    srd(SRD_OUT, sOUT, 2048*2560)
    stamp()

W8 = {0: ("c", "-s"), 1: ("q", "-p"), 2: ("-s", "-c"), 3: ("-p", "-q"), 4: ("-c", "s"), 5: ("-q", "p"), 6: ("s", "c"), 7: ("p", "q")}
def p1_consts():
    t = vTMP
    fa, base, th, c, s, p, q, u = t, t+1, t+2, t+3, t+4, t+5, t+6, t+7
    a(f"s_and_b32 s{sT0}, s{sWAVE}, 1\ns_mul_i32 s{sT0}, s{sT0}, 12\ns_cmp_lt_u32 s{sWAVE}, 2\ns_cselect_b32 s{sT0}, 0, s{sT0}")
    a(f"v_add_u32 v{fa}, s{sT0}, v{vN}\nv_cvt_f32_u32 v{fa}, v{fa}")
    a(f"v_lshlrev_b32 v{u}, 2, v{vG}\nv_cvt_f32_u32 v{u}, v{u}")
    a(f"v_mul_f32 v{base}, {fl(1/640)}, v{fa}")
    for mu in range(2):
        for i in range(4):
            k = 4*mu + i
            a(f"v_add_f32 v{th}, {fl(16*mu+i)}, v{u}\nv_mul_f32 v{th}, v{th}, v{base}")
            sincos(vTW+2*k+1, vTW+2*k, th)
    a(f"v_cvt_f32_u32 v{c}, v{vN}\nv_mul_f32 v{base}, {fl(1/32)}, v{c}")
    a(f"v_and_b32 v{p}, 1, v{vN}\nv_sub_u32 v{p}, 0, v{p}\nv_and_b32 v{p}, 0x80008000, v{p}")
    for i in range(4):
        a(f"v_add_f32 v{th}, {fl(i)}, v{u}\nv_mul_f32 v{th}, v{th}, v{base}")
        sincos(s, c, th)
        cvtpk(vB2+i, f"v{c}", f"v{s}"); cvtpk(vB2+4+i, f"-v{s}", f"v{c}")
        for part in range(2):
            src = vB2+4*part+i
            if i & 1: a(f"v_xor_b32 v{vB2+8+4*part+i}, 0x80008000, v{src}")
            else: a(f"v_mov_b32 v{vB2+8+4*part+i}, v{src}")
            a(f"v_xor_b32 v{vB2+16+4*part+i}, v{p}, v{src}")
            a(f"v_xor_b32 v{vB2+24+4*part+i}, v{p}, v{vB2+8+4*part+i}")
    a(f"v_and_b32 v{u}, 1, v{vG}\nv_lshlrev_b32 v{u}, 1, v{u}\nv_lshrrev_b32 v{th}, 1, v{vG}\nv_add_u32 v{u}, v{u}, v{th}\nv_cvt_f32_u32 v{u}, v{u}")
    a(f"v_mul_f32 v{base}, {fl(1/20)}, v{fa}")
    done = newlab("p1c_done")
    variants = [(0, 0), (1, 4), (2, 1), (4, 2), (6, 3)]
    labs = [newlab("p1c") for _ in variants]
    a(f"s_cmp_eq_u32 s{sWAVE}, 1\ns_cbranch_scc1 {labs[1]}")
    a(f"s_lshr_b32 s{sT0}, s{sWAVE}, 1")
    for j in (2, 3, 4):
        a(f"s_cmp_eq_u32 s{sT0}, {j-1}\ns_cbranch_scc1 {labs[j]}")
    for vi, (w0, k1) in enumerate(variants):
        a.label(labs[vi])
        for sg in range(5):
            cc, ss, pp, qq = [x + 8*(sg & 1) for x in (c+8, s+8, p+8, q+8)]
            a(f"v_add_f32 v{th}, {fl(4*sg)}, v{u}\nv_mul_f32 v{th}, v{th}, v{base}")
            sincos(ss, cc, th)
            if k1 & 1:
                a(f"v_add_f32 v{pp}, v{cc}, v{ss}\nv_sub_f32 v{qq}, v{cc}, v{ss}")
                a(f"v_mul_f32 v{pp}, {fl(math.sqrt(0.5))}, v{pp}\nv_mul_f32 v{qq}, {fl(math.sqrt(0.5))}, v{qq}")
            m = {"c": cc, "s": ss, "p": pp, "q": qq}
            def nm(x): return ("-" if x[0] == "-" else "") + f"v{m[x[-1]]}"
            for part in range(2):
                for jj in range(4):
                    cvtpk(vB+8*sg+4*part+jj, nm(W8[(2*jj*k1) % 8][part]), nm(W8[((2*jj+1)*k1) % 8][part]))
        if vi != len(variants)-1: a(f"s_branch {done}")
    a.label(done)

def misc_addrs():
    t = vTMP
    a(f"v_and_b32 v{t}, 255, v0\nv_lshlrev_b32 v{t}, 3, v{t}\nv_sub_u32 v{t}, 2048, v{t}")
    a(f"v_lshrrev_b32 v{t+1}, 8, v0\nv_mul_u32_u24 v{t+1}, {KDS}, v{t+1}\nv_add_u32 v{t+1}, {L_KD+8}, v{t+1}")
    for j in range(1, 12):
        l, f = t+2+2*(j & 1), t+3+2*(j & 1)
        a(f"v_subrev_u32 v{l}, {j}, v{t}\nv_max_i32 v{f}, 0, v{l}\nv_cvt_f32_u32 v{f}, v{f}")
        cvtpk(f, f"v{f}", f"v{f}")
        a(f"v_and_b32 v{f}, 0xffff, v{f}\nv_subrev_u32 v{f}, 17024, v{f}\nv_min_i32 v{l}, 127, v{l}\nv_max_i32 v{l}, v{l}, v{f}")
        a(f"v_lshl_add_u32 v{vEA+j-1}, v{l}, 1, v{t+1}")
    for k in range(2):
        U, c, i, gm, ad = t, t+1, t+2, t+3, vNATA+k
        a(f"v_lshrrev_b32 v{U}, 3, v0")
        if k: a(f"v_add_u32 v{U}, 64, v{U}")
        a(f"v_and_b32 v{c}, 7, v{U}\nv_lshrrev_b32 v{i}, 3, v{U}")
        if k:
            a(f"v_and_b32 v{gm}, 1, v{U}\nv_lshlrev_b32 v{gm}, 2, v{gm}\nv_cmp_le_u32 vcc, 112, v{U}\nv_cndmask_b32 v{c}, v{c}, v{gm}, vcc")
            a(f"v_bfe_u32 v{gm}, v{U}, 1, 1\nv_add_u32 v{gm}, 14, v{gm}\nv_cndmask_b32 v{i}, v{i}, v{gm}, vcc")
        a(f"v_and_b32 v{gm}, 7, v0\nv_lshl_add_u32 v{gm}, v{i}, 3, v{gm}")
        a(f"v_subrev_u32 v{i}, 1, v{c}\nv_mul_u32_u24 v{i}, 2576, v{i}")
        a(f"v_sub_u32 v{ad}, 7, v{c}\nv_mul_u32_u24 v{ad}, 2576, v{ad}\nv_add_u32 v{ad}, 1284, v{ad}")
        a(f"v_cmp_gt_u32 vcc, 4, v{c}\nv_cndmask_b32 v{ad}, v{ad}, v{i}, vcc")
        a(f"v_mul_u32_u24 v{i}, 384, v{c}\nv_add_u32 v{i}, 7728, v{i}\nv_and_b32 v{c}, 3, v{c}\nv_cmp_eq_u32 vcc, 0, v{c}\nv_cndmask_b32 v{ad}, v{ad}, v{i}, vcc")
        a(f"v_mov_b32 v{i}, 107\nv_mov_b32 v{c}, 128\nv_cndmask_b32 v{i}, v{i}, v{c}, vcc")
        a(f"v_mul_u32_u24 v{c}, 12, v{gm}\nv_add_u32 v{ad}, v{ad}, v{c}\nv_mov_b32 v{c}, 10800\nv_cmp_lt_u32 vcc, v{gm}, v{i}\nv_cndmask_b32 v{ad}, v{c}, v{ad}, vcc")
        a(f"v_add_u32 v{ad}, {L_NAT}, v{ad}")
    for k in range(2):
        row, gm, r, oc = t, t+1, t+2, t+3
        a(f"v_lshrrev_b32 v{row}, 3, v0")
        if k: a(f"v_add_u32 v{row}, 64, v{row}")
        a(f"v_mul_u32_u24 v{gm}, 43, v{row}\nv_lshrrev_b32 v{gm}, 8, v{gm}")
        a(f"v_mul_u32_u24 v{r}, 6, v{gm}\nv_sub_u32 v{r}, v{row}, v{r}\nv_and_b32 v{oc}, 7, v0\nv_xor_b32 v{gm}, v{gm}, v{oc}")
        a(f"v_lshlrev_b32 v{gm}, 4, v{gm}\nv_lshl_add_u32 v{gm}, v{r}, 1, v{gm}\nv_lshl_add_u32 v{gm}, v{oc}, 11, v{gm}\nv_add_u32 v{vT1W+k}, {L_T1}, v{gm}")
    a(f"v_lshrrev_b32 v{t}, 4, v0\nv_lshrrev_b32 v{t+1}, 7, v0\nv_xor_b32 v{t+1}, v{t+1}, v{vN}\nv_lshlrev_b32 v{t+1}, 4, v{t+1}\nv_lshl_add_u32 v{t+1}, v{t}, 8, v{t+1}\nv_add_u32 v{vT1R}, {L_T1}, v{t+1}")
    a(f"s_mul_i32 s{sT0}, s{sCG}, {64*CS_}\ns_lshl_b32 s{sT1}, s{sTB}, 8\ns_add_u32 s{sT0}, s{sT0}, s{sT1}")
    a(f"v_mul_u32_u24 v{t}, {CS_}, v{t}\nv_lshl_add_u32 v{t}, v{vN}, 4, v{t}\nv_add_u32 v{t}, s{sT0}, v{t}")
    a(f"s_cmp_eq_u32 s{sTB}, 21\ns_cselect_b32 s{sT0}, 8, 16\ns_cmp_ge_u32 s2, 220\ns_cselect_b32 s{sT0}, 0, s{sT0}")
    a(f"v_mov_b32 v{t+1}, 0x40000000\nv_cmp_gt_u32 vcc, s{sT0}, v{vN}\nv_cndmask_b32 v{vUTO}, v{t+1}, v{t}, vcc")
    a(f"v_and_b32 v{vKT}, 127, v0\nv_lshlrev_b32 v{vKT}, 2, v{vKT}")

def dt_compute():
    a("s_waitcnt lgkmcnt(0)")
    a(f"s_add_u32 s{sTAG}, s{sTAG}, 1")
    a(f"s_and_b32 s{sT0}, s{sCH0}, 1\ns_lshl_b32 s{sT0}, s{sT0}, 4\ns_lshr_b64 {sp(sLD)}, {sp(sLD)}, s{sT0}\ns_lshr_b64 {sp(sDS)}, {sp(sDS)}, s{sT0}")
    a(f"s_lshl_b32 s{sT0}, s{sLD}, 16\ns_and_b32 s{sT1}, s{sLD}, 0xffff0000\ns_lshl_b32 s{sT2}, s{sLD+1}, 16")
    for c, s in enumerate((sT0, sT1, sT2)):
        a(f"v_mov_b32 v{vDT+c}, s{s}\nv_mul_f32 v{vDT+c}, {fl(1.4426950408889634)}, v{vDT+c}\nv_exp_f32 v{vDT+c}, v{vDT+c}")
    for c in range(3):
        cvtpk(vDT+c, f"v{vDT+c}", f"v{vDT+c}")
        a(f"v_lshlrev_b32 v{vDT+c}, 16, v{vDT+c}")

class Z:
    nxt = 0
def kgen_rows(chs):
    base = vTMP
    def cm(d, x, y):
        a(f"v_mul_f32 v{d}, v{x+1}, v{y+1}\nv_mul_f32 v{d+1}, v{x+1}, v{y}\nv_fma_f32 v{d}, v{x}, v{y}, -v{d}\nv_fmac_f32 v{d+1}, v{x}, v{y+1}")
    def cm_many(lst):
        for d, x, y in lst: a(f"v_mul_f32 v{d}, v{x+1}, v{y+1}\nv_mul_f32 v{d+1}, v{x+1}, v{y}")
        for d, x, y in lst: a(f"v_fma_f32 v{d}, v{x}, v{y}, -v{d}\nv_fmac_f32 v{d+1}, v{x}, v{y+1}")
    P, Q = base, base+1
    tmpc = [base+2, base+3]
    wr_i = [0]
    def direct_many(lst):
        for k, (d, L) in enumerate(lst):
            t = base+4+2*k
            a(f"v_mul_f32 v{t}, {fl(L)}, v{P}\nv_mul_f32 v{t+1}, {fl(L)}, v{Q}")
        for k, (d, L) in enumerate(lst):
            t = base+4+2*k
            a(f"v_exp_f32 v{t}, v{t}\nv_fract_f32 v{t+1}, v{t+1}")
        for k, (d, L) in enumerate(lst):
            t = base+4+2*k
            a(f"v_cos_f32 v{d}, v{t+1}\nv_sin_f32 v{d+1}, v{t+1}")
        for k, (d, L) in enumerate(lst):
            t = base+4+2*k
            a(f"v_mul_f32 v{d}, v{d}, v{t}\nv_mul_f32 v{d+1}, v{d+1}, v{t}")
    def wrow(c, row, z, neg=False):
        t = tmpc[wr_i[0] & 1]; wr_i[0] += 1
        cvtpk(t, f"v{z}", ("-" if neg else "") + f"v{z+1}")
        off = c*TSZ + row*TROW
        if off < 65536: a(f"ds_write_b32 v{vKT}, v{t} offset:{off}")
        else: a(f"ds_write_b32 v{base+11}, v{t} offset:{off-32768}")
    z = lambda k: base + 12 + 2*k
    grp_labels = [newlab("kg") for _ in range(4)]
    done = newlab("kg_done")
    a(f"v_add_u32 v{base+11}, 32768, v{vKT}")
    a(f"s_lshr_b32 s{sT0}, s{sWAVE}, 1")
    for g in (1, 2, 3):
        a(f"s_cmp_eq_u32 s{sT0}, {g}\ns_cbranch_scc1 {grp_labels[g]}")
    for g in range(4):
        a.label(grp_labels[g])
        for c in chs:
            pr = vPAR + 6*c
            a(f"v_lshlrev_b32 v{P}, 16, v{pr}\nv_lshlrev_b32 v{Q}, 16, v{pr+1}\nv_mul_f32 v{P}, v{P}, v{vDT+c}\nv_mul_f32 v{Q}, v{Q}, v{vDT+c}")
            a(f"v_mul_f32 v{P}, {fl(1.4426950408889634)}, v{P}\nv_mul_f32 v{Q}, {fl(0.15915494309189535)}, v{Q}")
            if g == 0:
                z8, z16, C, dB, e0, e1, f0, f1 = [z(k) for k in range(8)]
                direct_many([(z8, 8), (z16, 16)])
                for j in range(4): a(f"v_lshlrev_b32 v{(dB, dB+1, C, C+1)[j]}, 16, v{pr+2+j}")
                a(f"v_mul_f32 v{dB}, v{dB}, v{vDT+c}\nv_mul_f32 v{dB+1}, v{dB+1}, v{vDT+c}")
                cm(e0, C, dB); cm(e1, e0, z8)
                cur = [e0, e1]; nxt = [f0, f1]
                for k in range(8):
                    if k < 7: cm_many([(nxt[0], cur[0], z16), (nxt[1], cur[1], z16)])
                    wrow(c, 41+2*k, cur[0], True); wrow(c, 42+2*k, cur[1], True)
                    cur, nxt = nxt, cur
            elif g == 1:
                zz = {k: z(k) for k in range(1, 8)}; z128 = z(8); o = [z(9), z(10), z(11), z(12)]
                direct_many([(zz[1], 1), (z128, 128)])
                a(f"v_mov_b32 v{tmpc[0]}, 0x3f80")
                off = c*TSZ
                a(f"ds_write_b32 v{vKT}, v{tmpc[0]} offset:{off}" if off < 65536 else f"ds_write_b32 v{base+11}, v{tmpc[0]} offset:{off-32768}")
                wr_i[0] = 1
                cm_many([(zz[2], zz[1], zz[1]), (o[0], z128, zz[1])]); wrow(c, 1, zz[1]); wrow(c, 8, z128)
                cm_many([(zz[3], zz[2], zz[1]), (zz[4], zz[2], zz[2]), (o[1], z128, zz[2])]); wrow(c, 2, zz[2]); wrow(c, 9, o[0])
                cm_many([(zz[5], zz[4], zz[1]), (zz[6], zz[4], zz[2]), (zz[7], zz[4], zz[3]), (o[2], z128, zz[3]), (o[3], z128, zz[4])])
                wrow(c, 3, zz[3]); wrow(c, 4, zz[4]); wrow(c, 10, o[1])
                cm_many([(o[0], z128, zz[5]), (o[1], z128, zz[6])]); wrow(c, 11, o[2]); wrow(c, 12, o[3]); wrow(c, 5, zz[5])
                cm_many([(o[2], z128, zz[7])]); wrow(c, 6, zz[6]); wrow(c, 7, zz[7]); wrow(c, 13, o[0]); wrow(c, 14, o[1]); wrow(c, 15, o[2])
            elif g == 2:
                z2, z4, z6, z128, z256, z384, z512, z640, z768, z896 = [z(k) for k in range(10)]; o = [z(10+k) for k in range(4)]
                direct_many([(z2, 2), (z128, 128), (z256, 256)])
                cm_many([(z4, z2, z2), (z384, z256, z128), (z512, z256, z256), (o[0], z256, z2)]); wrow(c, 16, z256)
                cm_many([(z6, z4, z2), (o[1], z256, z4), (o[2], z384, z2), (o[3], z384, z4), (z640, z512, z128)]); wrow(c, 17, o[0]); wrow(c, 20, z384); wrow(c, 24, z512)
                cm_many([(o[0], z256, z6), (z768, z512, z256), (z896, z512, z384)]); wrow(c, 18, o[1]); wrow(c, 21, o[2]); wrow(c, 22, o[3]); wrow(c, 26, z640)
                cm_many([(o[1], z384, z6), (o[2], z512, z4), (o[3], z640, z4)]); wrow(c, 19, o[0]); wrow(c, 28, z768); wrow(c, 30, z896)
                cm_many([(o[0], z768, z4), (z2, z896, z4)]); wrow(c, 23, o[1]); wrow(c, 25, o[2]); wrow(c, 27, o[3]); wrow(c, 29, o[0]); wrow(c, 31, z2)
            else:
                z128, z256, z1024, a1, a2, a3, b1, b2 = [z(k) for k in range(8)]
                direct_many([(z128, 128), (z256, 256), (z1024, 1024)])
                cm_many([(a1, z1024, z128), (a2, z1024, z256), (a3, z1024, z1024)]); wrow(c, 32, z1024)
                cm_many([(b1, a1, z256), (b2, a2, z256)]); wrow(c, 33, a1); wrow(c, 34, a2); wrow(c, 40, a3)
                cm_many([(a1, b1, z256), (a2, b2, z256)]); wrow(c, 35, b1); wrow(c, 36, b2)
                cm_many([(b1, a1, z256)]); wrow(c, 37, a1); wrow(c, 38, a2); wrow(c, 39, b1)
        if g != 3: a(f"s_branch {done}")
    a.label(done)

def t1_p1():
    a("s_waitcnt vmcnt(0)")
    stamp()
    a(f"s_mul_i32 s{sT0}, s{sWAVE}, {XS}\nv_lshlrev_b32 v{vT0}, 4, v{vLANE}\nv_add_u32 v{vT0}, s{sT0}, v{vT0}\nv_lshlrev_b32 v{vT1}, 2, v{vLANE}\nv_add_u32 v{vT1}, s{sT0}, v{vT1}")
    a(f"v_add_u32 v{vT0}, {L_X}, v{vT0}\nv_add_u32 v{vT1}, {L_X}, v{vT1}")
    a(f"ds_write_b128 v{vT0}, {v4(vXD)}\nds_write_b32 v{vT1}, v{vXD+4} offset:1024")
    for e in range(8):
        a(f"ds_write_b16{'_d16_hi' if e & 1 else ''} v{vT1W}, v{vUD+e//2} offset:{256*e}")
    l = newlab("t1w")
    a(f"s_cmp_ge_u32 s{sWAVE}, 4\ns_cbranch_scc1 {l}")
    for e in range(8):
        a(f"ds_write_b16{'_d16_hi' if e & 1 else ''} v{vT1W+1}, v{vUD+4+e//2} offset:{256*e}")
    a.label(l)
    a(f"v_bfe_u32 v{vT0}, v{vLANE}, 2, 2\nv_mul_u32_u24 v{vT0}, {XS}, v{vT0}\nv_and_b32 v{vT1}, 3, v{vLANE}\nv_lshl_add_u32 v{vT0}, v{vT1}, 3, v{vT0}")
    a(f"v_and_b32 v{vT1}, 1, v{vG}\nv_lshl_add_u32 v{vT0}, v{vT1}, 7, v{vT0}\nv_lshrrev_b32 v{vT1}, 1, v{vG}\nv_lshl_add_u32 v{vT0}, v{vT1}, 6, v{vT0}\nv_add_u32 v{vT0}, {L_X}, v{vT0}")
    a(f"v_xor_b32 v{vT2}, 64, v{vT1R}")
    a("s_waitcnt lgkmcnt(0)\ns_barrier")
    a(f"ds_read_b128 {v4(vUD)}, v{vT1R}\nds_read_b128 {v4(vUD+4)}, v{vT2} offset:8192")
    A = vTMP
    for sg in range(5):
        for mu in range(2):
            r = A + (mu*5+sg)*4
            a(f"ds_read_b64_tr_b16 {v2(r)}, v{vT0} offset:{sg*256+mu*32}\nds_read_b64_tr_b16 {v2(r+2)}, v{vT0} offset:{sg*256+mu*32+4*XS}")
    a("s_waitcnt lgkmcnt(15)")
    a(f"v_mov_b32 v{vUD+3}, s{sTAG}\nv_mov_b32 v{vUD+7}, s{sTAG}")
    a(f"s_mov_b32 s{sT0}, {UTB}\ns_mov_b32 s{sT1}, {UTB+32*CS_}")
    a(f"buffer_store_dwordx4 {v4(vUD)}, v{vUTO}, {s4(SRD_WS)}, s{sT0} offen {SC}")
    a(f"buffer_store_dwordx4 {v4(vUD+4)}, v{vUTO}, {s4(SRD_WS)}, s{sT1} offen {SC}")
    D = vTMP + 40
    for sg in range(5):
        a(f"s_waitcnt lgkmcnt({max(0, 16-4*sg-0) if 16-4*sg < 15 else 15})" if sg else "s_waitcnt lgkmcnt(15)")
        for mu in range(2):
            for part in range(2):
                d = D + (mu*2+part)*4
                a(f"v_mfma_f32_16x16x32_bf16 {v4(d)}, {v4(A+(mu*5+sg)*4)}, {v4(vB+8*sg+4*part)}, {'0' if sg == 0 else v4(d)}")
    a(f"s_lshr_b32 s{sT0}, s{sWAVE}, 1\ns_and_b32 s{sT1}, s{sWAVE}, 1")
    a(f"s_mul_i32 s{sT2}, s{sT0}, 2576\ns_mul_i32 s{sT3}, s{sT1}, 48\ns_add_u32 s{sT2}, s{sT2}, s{sT3}\ns_add_u32 s{sT2}, s{sT2}, {L_NAT-2576}")
    a(f"s_mul_i32 s{sT3}, s{sT1}, 1536\ns_add_u32 s{sT3}, s{sT3}, {L_NAT+7728}")
    a(f"s_cmp_eq_u32 s{sT0}, 0\ns_cselect_b32 s{sT2}, s{sT3}, s{sT2}\ns_cselect_b32 s{sT3}, 48, 80\ns_cselect_b32 s{sT1}, 0, s{sT1}")
    a(f"v_mul_u32_u24 v{vT0}, s{sT3}, v{vN}\nv_lshl_add_u32 v{vT0}, v{vG}, 4, v{vT0}\nv_add_u32 v{vT0}, s{sT2}, v{vT0}")
    a(f"s_lshl_b32 s{sT3}, s{sT3}, 4\nv_add_u32 v{vT1}, s{sT3}, v{vT0}")
    a(f"s_mov_b32 s{sEX}, -1\ns_cmp_eq_u32 s{sT1}, 1\ns_cselect_b32 s{sEX+1}, 0, 0xffff")
    F = vTMP
    T = vTMP + 8
    for mu in range(2):
        for i in range(4):
            re, im = D+(mu*2)*4+i, D+(mu*2+1)*4+i
            c, s = vTW+2*(4*mu+i), vTW+2*(4*mu+i)+1
            t = T + 2*i
            a(f"v_mul_f32 v{t}, v{re}, v{c}\nv_mul_f32 v{t+1}, v{im}, v{c}\nv_fmac_f32 v{t}, v{im}, v{s}\nv_fma_f32 v{t+1}, -v{re}, v{s}, v{t+1}")
        for i in range(4):
            cvtpk(F+4*mu+i, f"v{T+2*i}", f"v{T+2*i+1}")
    E = vTMP + 16
    for mu in range(2):
        for t in range(2):
            for part in range(2):
                d = E + (t*2+part)*4
                a(f"v_mfma_f32_16x16x32_bf16 {v4(d)}, {v4(F+4*mu)}, {v4(vB2+((mu*2+t)*2+part)*4)}, {'0' if mu == 0 else v4(d)}")
    O = vTMP + 32
    for t in range(2):
        for i in range(4):
            cvtpk(O+4*t+i, f"v{E+(t*2)*4+i}", f"v{E+(t*2+1)*4+i}")
    a(f"s_mov_b64 exec, {sp(sEX)}")
    a(f"ds_write_b128 v{vT0}, {v4(O)}\nds_write_b128 v{vT1}, {v4(O+4)}")
    a("s_mov_b64 exec, -1")
    a(f"s_mul_i32 s{sT0}, s2, {ZS}\ns_add_u32 s{sT0}, s{sT0}, {ZB}\ns_add_u32 s{sT1}, s{sT0}, 8192\nv_lshlrev_b32 v{vT2}, 4, v0")
    a(f"v_mov_b32 v{vT3}, 0x40000000\nv_cmp_gt_u32 vcc, {928-512}, v0\nv_cndmask_b32 v{vT3}, v{vT3}, v{vT2}, vcc")
    a("s_waitcnt lgkmcnt(0)\ns_barrier")
    for k in range(2):
        a(f"ds_read2_b32 {v2(O+4*k)}, v{vNATA+k} offset0:0 offset1:1\nds_read_b32 v{O+4*k+2}, v{vNATA+k} offset:8")
    a(f"v_mov_b32 v{O+3}, s{sTAG}\nv_mov_b32 v{O+7}, s{sTAG}")
    a("s_waitcnt lgkmcnt(2)")
    a(f"buffer_store_dwordx4 {v4(O)}, v{vT2}, {s4(SRD_WS)}, s{sT0} offen {SC}")
    a("s_waitcnt lgkmcnt(0)")
    a(f"buffer_store_dwordx4 {v4(O+4)}, v{vT3}, {s4(SRD_WS)}, s{sT1} offen {SC}")
    stamp()

def poll(loads, regs, active_off=None):
    L, Dn = newlab("poll"), newlab("polld")
    a(f"s_mov_b32 s{sPOLL}, 0")
    a.label(L)
    for l in loads: a(l)
    a("s_waitcnt vmcnt(0)")
    a(f"v_cmp_ne_u32 vcc, s{sTAG}, v{regs[0]+3}")
    for r in regs[1:]:
        a(f"v_cmp_ne_u32 {sp(sEX2)}, s{sTAG}, v{r+3}\ns_or_b64 vcc, vcc, {sp(sEX2)}")
    a(f"s_and_b64 exec, exec, vcc\ns_cbranch_execz {Dn}")
    a(f"s_add_u32 s{sPOLL}, s{sPOLL}, 1\ns_cmp_gt_u32 s{sPOLL}, {POLL_MAX}\ns_cbranch_scc1 {Dn}\ns_sleep 2\ns_branch {L}")
    a.label(Dn)

vWL = 104
def unit_params():
    a(f"s_and_b32 s{sT0}, s2, 7\ns_lshr_b32 s{sUI}, s2, 3")
    a(f"s_and_b32 s{sT1}, s2, 1\ns_lshl_b32 s{sT1}, s{sT1}, 2\ns_bfe_u32 s{sT2}, s2, 0x10001\ns_add_u32 s{sT2}, s{sT2}, 14")
    a(f"s_cmp_ge_u32 s2, 112\ns_cselect_b32 s{sT0}, s{sT1}, s{sT0}\ns_cselect_b32 s{sUI}, s{sT2}, s{sUI}")
    a(f"s_sub_u32 s{sT1}, 8, s{sT0}\ns_cmp_gt_u32 s{sT0}, 4\ns_cselect_b32 s{sR}, s{sT1}, s{sT0}\ns_cselect_b32 s{sMIR}, 1, 0")
    a(f"s_lshr_b32 s{sT1}, s{sUI}, 3\ns_and_b32 s{sT2}, s{sT0}, 3\ns_cmp_eq_u32 s{sT2}, 0\ns_cselect_b32 s{sMIR}, s{sT1}, s{sMIR}")

def w_issue():
    srd(SRD_WR, sWR, 2048*642); srd(SRD_WI, sWI, 2048*642)
    p, kd, row = vT0, vT1, vT2
    a(f"v_and_b32 v{p}, 3, v0\nv_mul_u32_u24 v{kd}, 6, v{p}")
    a(f"v_lshrrev_b32 v{row}, 1, v{p}\nv_lshlrev_b32 v{row}, 3, v{row}")
    a(f"s_and_b32 s{sT0}, s{sR}, 3\ns_mul_i32 s{sT1}, s{sUI}, 24\ns_mul_i32 s{sT2}, s{sMIR}, 321\ns_add_u32 s{sT1}, s{sT1}, s{sT2}\ns_mul_i32 s{sT2}, s{sUI}, 40")
    a(f"s_cmp_eq_u32 s{sT0}, 0\ns_cselect_b32 s{sT1}, s{sT2}, s{sT1}\ns_cselect_b32 s{sT2}, -1, 0")
    a(f"v_and_b32 v{row}, s{sT2}, v{row}\nv_add3_u32 v{kd}, v{kd}, v{row}, s{sT1}")
    a(f"v_sub_u32 v{row}, 635, v{kd}\ns_cmp_eq_u32 s{sMIR}, 1\ns_cselect_b64 vcc, -1, 0\nv_cndmask_b32 v{kd}, v{kd}, v{row}, vcc")
    for k in range(2):
        a(f"v_lshrrev_b32 v{row}, 2, v0\nv_lshlrev_b32 v{row}, 3, v{row}\nv_add_u32 v{row}, s{sR}, v{row}")
        if k: a(f"v_add_u32 v{row}, 1024, v{row}")
        a(f"v_sub_u32 v{vT3}, 2048, v{row}\nv_and_b32 v{vT3}, 2047, v{vT3}")
        a(f"v_mul_u32_u24 v{vT4+k}, 642, v{vT3}")
        a(f"v_cndmask_b32 v{row}, v{row}, v{vT3}, vcc\nv_mul_u32_u24 v{row}, 642, v{row}\nv_lshl_add_u32 v{row}, v{kd}, 1, v{row}")
        a(f"buffer_load_dwordx3 {v3(vWL+8*k)}, v{row}, {s4(SRD_WR)}, 0 offen\nbuffer_load_dwordx3 {v3(vWL+8*k+4)}, v{row}, {s4(SRD_WI)}, 0 offen")
    l = newlab("noavg")
    a(f"s_and_b32 s{sT0}, s{sR}, 3\ns_cmp_eq_u32 s{sT0}, 0\ns_cbranch_scc1 {l}\ns_cmp_eq_u32 s{sMIR}, 1\ns_cbranch_scc1 {l}")
    a(f"s_cmp_eq_u32 s{sUI}, 13\ns_cselect_b32 s{sT0}, 640, 0")
    for k in range(2):
        a(f"buffer_load_ushort v{vWL+8*k+3}, v{vT4+k}, {s4(SRD_WR)}, s{sT0} offen\nbuffer_load_ushort v{vWL+8*k+7}, v{vT4+k}, {s4(SRD_WI)}, s{sT0} offen")
    a.label(l)

def w_stage():
    t = vTMP
    lm, ld = newlab("wmir"), newlab("wdone")
    l = newlab("noavg2")
    a(f"s_and_b32 s{sT0}, s{sR}, 3\ns_cmp_eq_u32 s{sT0}, 0\ns_cbranch_scc1 {l}\ns_cmp_eq_u32 s{sMIR}, 1\ns_cbranch_scc1 {l}")
    for ui, piece, dw in ((0, 0, 0), (13, 1, 1)):
        l2 = newlab("avg")
        a(f"s_cmp_lg_u32 s{sUI}, {ui}\ns_cbranch_scc1 {l2}")
        a(f"v_and_b32 v{t}, 3, v0\nv_cmp_eq_u32 vcc, {piece}, v{t}\ns_and_saveexec_b64 {sp(sEX)}, vcc")
        for k in range(2):
            for part in range(2):
                w = vWL+8*k+4*part+dw; o = vWL+8*k+4*part+3
                a(f"v_lshlrev_b32 v{t}, 16, v{w}\nv_lshlrev_b32 v{o}, 16, v{o}")
                a(f"v_add_f32 v{t}, v{t}, v{o}" if part == 0 else f"v_sub_f32 v{t}, v{t}, v{o}")
                a(f"v_mul_f32 v{t}, 0.5, v{t}")
                cvtpk(t, f"v{t}", f"v{t}")
                a(f"v_and_b32 v{t}, 0xffff, v{t}\nv_and_b32 v{w}, 0xffff0000, v{w}\nv_or_b32 v{w}, v{w}, v{t}")
        a(f"s_mov_b64 exec, {sp(sEX)}")
        a.label(l2)
    a.label(l)
    ad = t + 16
    a(f"v_and_b32 v{ad}, 3, v0\nv_lshlrev_b32 v{ad}, 13, v{ad}\nv_lshrrev_b32 v{ad+1}, 2, v0\nv_lshl_add_u32 v{ad}, v{ad+1}, 4, v{ad}\nv_add_u32 v{ad}, {L_W}, v{ad}")
    a(f"s_mov_b32 s{sT0}, 0x05040100\ns_mov_b32 s{sT1}, 0x07060302")
    a(f"s_cmp_eq_u32 s{sMIR}, 1\ns_cbranch_scc1 {lm}")
    for mir in range(2):
        if mir: a.label(lm)
        for k in range(2):
            wr, wi = vWL+8*k, vWL+8*k+4
            if mir:
                for j in range(3): a(f"v_xor_b32 v{wi+j}, 0x80008000, v{wi+j}")
            for j in range(6):
                e = 5-j if mir else j
                dst = t + 8*k + (j//3)*4 + j % 3
                a(f"v_perm_b32 v{dst}, v{wi+e//2}, v{wr+e//2}, s{sT1 if e & 1 else sT0}")
            a(f"ds_write_b128 v{ad}, {v4(t+8*k)} offset:{2048*k}\nds_write_b128 v{ad}, {v4(t+8*k+4)} offset:{2048*k+4096}")
        if not mir: a(f"s_branch {ld}")
    a.label(ld)

def k_mfma():
    t = vTMP
    A, B, D = t, t+32, t+64
    aa, ab, ao = vT0, vT1, vT2
    Lp, Ld, L2, Lw = newlab("kj"), newlab("kjd"), newlab("kj2"), newlab("kjw")
    a(f"s_mov_b32 s{sCNT}, s{sWAVE}")
    a.label(Lp)
    a(f"s_mul_i32 s{sT3}, s{sNCH}, 3\ns_cmp_ge_u32 s{sCNT}, s{sT3}\ns_cbranch_scc1 {Ld}")
    a(f"s_mul_i32 s{sT0}, s{sCNT}, 43\ns_lshr_b32 s{sT0}, s{sT0}, 7\ns_mul_i32 s{sT1}, s{sT0}, 3\ns_sub_u32 s{sT1}, s{sCNT}, s{sT1}")
    a(f"v_mul_u32_u24 v{ab}, {TROW}, v{vN}\nv_lshl_add_u32 v{ab}, v{vG}, 4, v{ab}\ns_mul_i32 s{sT2}, s{sT0}, {TSZ}\nv_add_u32 v{ab}, s{sT2}, v{ab}")
    a(f"s_mul_i32 s{sT2}, s{sT1}, {16*TROW}\nv_add_u32 v{aa}, s{sT2}, v{ab}")
    for sg in range(8):
        a(f"ds_read_b128 {v4(A+4*sg)}, v{aa} offset:{64*sg}\nds_read_b128 {v4(B+4*sg)}, v{ab} offset:{41*TROW+64*sg}")
    a(f"s_mul_i32 s{sT2}, s{sT0}, {KDS}\ns_add_u32 s{sT2}, s{sT2}, {L_KD+8}")
    a(f"s_lshl_b32 s{sT3}, s{sT0}, 4\ns_lshr_b64 {sp(sEX2)}, {sp(sDS)}, s{sT3}\ns_lshl_b32 s{sT3}, s{sEX2}, 16\ns_cmp_eq_u32 s{sT1}, 0\ns_cselect_b32 s{sT3}, s{sT3}, 0")
    a(f"v_mov_b32 v{D}, 0\nv_mov_b32 v{D+1}, 0\nv_mov_b32 v{D+2}, 0\nv_mov_b32 v{D+3}, 0\nv_writelane_b32 v{D}, s{sT3}, 0")
    for sg in range(8):
        a(f"s_waitcnt lgkmcnt({14-2*sg})")
        a(f"v_mfma_f32_16x16x32_bf16 {v4(D)}, {v4(A+4*sg)}, {v4(B+4*sg)}, {v4(D)}")
    a(f"s_cmp_eq_u32 s{sT1}, 2\ns_cbranch_scc1 {L2}")
    L1 = newlab("kj1")
    a(f"s_cmp_eq_u32 s{sT1}, 1\ns_cbranch_scc1 {L1}")
    a(f"v_lshrrev_b32 v{ao}, 1, v{vG}\nv_lshlrev_b32 v{ao}, 8, v{ao}\nv_lshl_add_u32 v{ao}, v{vN}, 4, v{ao}\nv_and_b32 v{ao+1}, 1, v{vG}\nv_lshl_add_u32 v{ao}, v{ao+1}, 3, v{ao}\nv_add_u32 v{ao}, s{sT2}, v{ao}\nv_add_u32 v{ao+1}, 4, v{ao}")
    a(f"s_branch {Lw}")
    a.label(L1)
    a(f"v_lshlrev_b32 v{ao}, 7, v{vG}\nv_add_u32 v{ao}, 512, v{ao}\nv_add_u32 v{ao}, s{sT2}, v{ao}\nv_lshlrev_b32 v{ao+1}, 3, v{vN}\nv_lshlrev_b32 v{ao+2}, 2, v{vN}")
    a(f"v_cmp_gt_u32 vcc, 2, v{vG}\nv_cndmask_b32 v{ao+1}, v{ao+2}, v{ao+1}, vcc\nv_add_u32 v{ao}, v{ao}, v{ao+1}\nv_mov_b32 v{ao+1}, 64\nv_cndmask_b32 v{ao+1}, v{ao+1}, 4, vcc\nv_add_u32 v{ao+1}, v{ao}, v{ao+1}")
    a.label(Lw)
    cvtpk(D, f"v{D}", f"v{D+1}"); cvtpk(D+2, f"v{D+2}", f"v{D+3}")
    a(f"ds_write_b32 v{ao}, v{D}\nds_write_b32 v{ao+1}, v{D+2}")
    Ln = newlab("kjn")
    a(f"s_branch {Ln}")
    a.label(L2)
    a(f"v_lshlrev_b32 v{ao}, 7, v{vG}\nv_lshl_add_u32 v{ao}, v{vN}, 1, v{ao}\nv_add_u32 v{ao}, s{sT2}, v{ao}")
    cvtpk(D, f"v{D}", f"v{D+1}"); cvtpk(D+2, f"v{D+2}", f"v{D+3}")
    a(f"ds_write_b16 v{ao}, v{D} offset:1024\nds_write_b16_d16_hi v{ao}, v{D} offset:1056\nds_write_b16 v{ao}, v{D+2} offset:1088\nds_write_b16_d16_hi v{ao}, v{D+2} offset:1120")
    a.label(Ln)
    a(f"s_add_u32 s{sCNT}, s{sCNT}, 8\ns_branch {Lp}")
    a.label(Ld)

def kd_zero():
    a(f"v_mul_u32_u24 v{vT0}, {KDS}, v{vLANE}\nv_add_u32 v{vT0}, {L_KD}, v{vT0}\nv_mov_b32 v{vT2}, 0\nv_mov_b32 v{vT3}, 0")
    a(f"s_mov_b64 exec, 7\nds_write_b64 v{vT0}, {v2(vT2)}\ns_mov_b64 exec, -1")

def expand():
    t = vTMP
    E, O = t, t+8
    l = newlab("nz")
    a(f"s_cmp_lg_u32 s{sWAVE}, 7\ns_cbranch_scc1 {l}")
    a(f"v_mov_b32 v{E}, 0\nv_mov_b32 v{E+1}, 0\nv_mov_b32 v{E+2}, 0\nv_mov_b32 v{E+3}, 0")
    a(f"v_mul_u32_u24 v{vT0}, {KCS}, v{vLANE}\ns_mov_b64 exec, 0xfff\nds_write_b128 v{vT0}, {v4(E)} offset:{L_KC+4096}\nds_write_b64 v{vT0}, {v2(E)} offset:{L_KC+4112}")
    a(f"s_mov_b32 exec_lo, -1\ns_mov_b32 exec_hi, 0\nv_lshlrev_b32 v{vT0}, 4, v{vLANE}")
    for c in range(3): a(f"ds_write_b128 v{vT0}, {v4(E)} offset:{L_U+c*US}")
    a("s_mov_b64 exec, -1")
    a.label(l)
    wa = vT1
    a(f"v_and_b32 v{wa}, 255, v0\nv_lshlrev_b32 v{wa}, 4, v{wa}\nv_lshrrev_b32 v{vT2}, 8, v0\nv_mul_u32_u24 v{vT2}, {KCH}, v{vT2}\nv_add_u32 v{wa}, v{wa}, v{vT2}")
    done = newlab("exd")
    for rnd in range(2):
        if rnd == 1:
            a(f"s_cmp_lt_u32 s{sNCH}, 3\ns_cbranch_scc1 {done}\ns_cmp_ge_u32 s{sWAVE}, 4\ns_cbranch_scc1 {done}")
        ko = 2*KDS*rnd; wo = L_KC + 2*KCH*rnd
        H = t + 16
        for j in range(1, 12):
            a(f"ds_read_u16 v{H+j}, v{vEA+j-1} offset:{ko}")
        for k in range(5):
            a(f"s_waitcnt lgkmcnt({8-2*k})")
            a(f"v_lshl_or_b32 v{O+k}, v{H+2*k+2}, 16, v{H+2*k+1}\nv_lshl_or_b32 v{E+k+1}, v{H+2*k+3}, 16, v{H+2*k+2}")
        a(f"ds_write_b128 v{wa}, {v4(E+2)} offset:{wo}")
        a(f"ds_write_b128 v{wa}, {v4(O)} offset:{wo+3*KCS}")
        a(f"v_add_u32 v{vT3}, {wo+2*KCS}, v{wa}\nv_add_u32 v{vT4}, {wo+KCS}, v{wa}")
        a(f"ds_write2_b32 v{vT3}, v{E+1}, v{E+2} offset0:0 offset1:1\nds_write2_b32 v{vT3}, v{E+3}, v{E+4} offset0:2 offset1:3")
        a(f"ds_write2_b32 v{vT4}, v{O+1}, v{O+2} offset0:0 offset1:1\nds_write2_b32 v{vT4}, v{O+3}, v{O+4} offset0:2 offset1:3")
    a.label(done)

def ut_poll():
    R = vTMP + 16
    done = newlab("utd")
    a(f"s_cmp_ge_u32 s{sWAVE}, 6\ns_cbranch_scc1 {done}")
    a(f"v_lshlrev_b32 v{vT0}, 4, v0\nv_mul_u32_u24 v{vT1}, 12, v0\ns_mul_i32 s{sT0}, s{sCH0}, {CS_}\ns_add_u32 s{sT0}, s{sT0}, {UTB}\ns_add_u32 s{sT1}, s{sT0}, {CS_}\ns_add_u32 s{sT2}, s{sT1}, {CS_}")
    a(f"s_cmp_lt_u32 s{sNCH}, 3\ns_cselect_b32 s{sT2}, s{sT1}, s{sT2}")
    a(f"v_cmp_gt_u32 vcc, 344, v0\ns_and_saveexec_b64 {sp(sEX)}, vcc\ns_mov_b64 {sp(sEX)}, exec")
    poll([f"buffer_load_dwordx4 {v4(R+4*c)}, v{vT0}, {s4(SRD_WS)}, s{(sT0, sT1, sT2)[c]} offen {SC}" for c in range(3)], [R, R+4, R+8])
    a(f"s_mov_b64 exec, {sp(sEX)}")
    for c in range(3):
        a(f"v_add_u32 v{vT2}, {L_U+c*US+512}, v{vT1}")
        a(f"ds_write2_b32 v{vT2}, v{R+4*c}, v{R+4*c+1} offset0:0 offset1:1\nds_write_b32 v{vT2}, v{R+4*c+2} offset:8")
    a("s_mov_b64 exec, -1")
    a.label(done)

vLA, vLB = 54, 55
vLA, vLB = 56, 57
def conv_addr(chreg_is_s, ch):
    a(f"v_and_b32 v{vLA}, 3, v{vN}\nv_mul_u32_u24 v{vLA}, {KCS}, v{vLA}\nv_lshl_add_u32 v{vLA}, v{vG}, 4, v{vLA}\nv_lshrrev_b32 v{vLB}, 2, v{vN}\nv_lshlrev_b32 v{vLB}, 3, v{vLB}\nv_sub_u32 v{vLA}, v{vLA}, v{vLB}")
    a(f"s_mul_i32 s{sT0}, {ch}, {KCH}\ns_add_u32 s{sT0}, s{sT0}, {L_KC+4056-3584}\nv_add_u32 v{vLA}, s{sT0}, v{vLA}")
    a(f"v_lshlrev_b32 v{vLB}, 5, v{vN}\nv_lshl_add_u32 v{vLB}, v{vG}, 4, v{vLB}\ns_mul_i32 s{sT0}, {ch}, {US}\ns_add_u32 s{sT0}, s{sT0}, {L_U+480}\nv_add_u32 v{vLB}, s{sT0}, v{vLB}")

def conv_core(nus, acc, fr, rho0, rho1, zero):
    nm = max(nus) + 1
    def loads(buf):
        b = fr + buf*8*nm
        out = []
        for x in range(nm):
            out.append(f"ds_read_b128 {v4(b+4*nm+4*x)}, v{vLB} offset:{512*x}")
            out.append(f"ds_read_b64 {v2(b+4*x)}, v{vLA} offset:{512*(7-x)}")
            out.append(f"ds_read_b64 {v2(b+4*x+2)}, v{vLA} offset:{512*(7-x)+8}")
        return out
    def mf(buf, first):
        b = fr + buf*8*nm
        out = []
        pairs = sorted([(nu, x) for nu in nus for x in range(nu+1)], key=lambda p: (max(p[1], p[0]-p[1]), p[0]))
        seen = set()
        for nu, x in pairs:
            d = acc + 4*nus.index(nu)
            c = "0" if (first and zero and nu not in seen) else v4(d)
            seen.add(nu)
            out.append((max(x, nu-x), f"v_mfma_f32_16x16x32_bf16 {v4(d)}, {v4(b+4*x)}, {v4(b+4*nm+4*(nu-x))}, {c}"))
        return out
    for l in loads(0): a(l)
    a(f"v_subrev_u32 v{vLA}, 64, v{vLA}\nv_subrev_u32 v{vLB}, 64, v{vLB}")
    n = rho1 - rho0
    for it in range(n):
        buf = it & 1
        m = mf(buf, it == 0)
        nl = loads(buf ^ 1) if it < n-1 else []
        a("s_waitcnt lgkmcnt(0)")
        k = 0
        per = 2
        for j, (_, ins) in enumerate(m):
            a(ins)
            for _ in range(per):
                if k < len(nl): a(nl[k]); k += 1
        while k < len(nl): a(nl[k]); k += 1
        if it < n-1: a(f"v_subrev_u32 v{vLA}, 64, v{vLA}\nv_subrev_u32 v{vLB}, 64, v{vLB}")

def conv_out(nus, acc, ch):
    a(f"v_lshlrev_b32 v{vT0}, 5, v{vN}\nv_lshl_add_u32 v{vT0}, v{vG}, 3, v{vT0}\ns_mul_i32 s{sT0}, {ch}, {YS}\ns_add_u32 s{sT0}, s{sT0}, {L_Y}\nv_add_u32 v{vT0}, s{sT0}, v{vT0}")
    for k, nu in enumerate(nus):
        d = acc + 4*k
        cvtpk(d, f"v{d}", f"v{d+1}"); cvtpk(d+1, f"v{d+2}", f"v{d+3}")
        a(f"ds_write_b64 v{vT0}, {v2(d)} offset:{512*nu}")

BIG, SMALL, H0, H1 = [7, 6, 5, 4, 0], [3, 2, 1], [7, 6, 2], [5, 4, 3, 1, 0]
def conv3():
    ls, ld = newlab("c3s"), newlab("c3d")
    a(f"s_cmp_ge_u32 s{sWAVE}, 4\ns_cbranch_scc1 {ld}\ns_cmp_eq_u32 s{sWAVE}, 3\ns_cbranch_scc1 {ls}")
    conv_addr(True, f"s{sWAVE}")
    conv_core(BIG, 64, 88, 0, 8, True)
    conv_out(BIG, 64, f"s{sWAVE}")
    a(f"s_branch {ld}")
    a.label(ls)
    a(f"s_mov_b32 s{sCNT}, 0")
    lp = newlab("c3l"); a.label(lp)
    conv_addr(True, f"s{sCNT}")
    conv_core(SMALL, 64, 88, 0, 8, True)
    conv_out(SMALL, 64, f"s{sCNT}")
    a(f"s_add_u32 s{sCNT}, s{sCNT}, 1\ns_cmp_lt_u32 s{sCNT}, 3\ns_cbranch_scc1 {lp}")
    a.label(ld)

C2ACC, C2FR = 104, 124
def conv2(part):
    l1, ld = newlab("c2h1"), newlab("c2d")
    a(f"s_lshr_b32 s{sCNT}, s{sWAVE}, 1")
    if part == 0: conv_addr(True, f"s{sCNT}")
    a(f"s_bitcmp1_b32 s{sWAVE}, 0\ns_cbranch_scc1 {l1}")
    for hi, nus in enumerate((H0, H1)):
        if hi: a.label(l1)
        if part == 0: conv_core(nus, C2ACC, C2FR, 0, RHO_SPLIT, True)
        else:
            conv_core(nus, C2ACC, C2FR, RHO_SPLIT, 8, False)
            conv_out(nus, C2ACC, f"s{sCNT}")
        if not hi: a(f"s_branch {ld}")
    a.label(ld)

def yt_store():
    R = vTMP
    done = newlab("ytd")
    a(f"s_cmp_ge_u32 s{sWAVE}, 6\ns_cbranch_scc1 {done}")
    a(f"v_lshlrev_b32 v{vT0}, 4, v0\nv_mul_u32_u24 v{vT1}, 12, v0\ns_mul_i32 s{sT0}, s{sCH0}, {CS_}\ns_add_u32 s{sT0}, s{sT0}, {YTB}\ns_add_u32 s{sT1}, s{sT0}, {CS_}\ns_add_u32 s{sT2}, s{sT1}, {CS_}")
    a(f"v_add_u32 v{vT1}, {L_Y}, v{vT1}")
    a(f"v_cmp_gt_u32 vcc, 344, v0\ns_and_saveexec_b64 {sp(sEX)}, vcc")
    for c in range(3):
        a(f"ds_read_b32 v{R+4*c}, v{vT1} offset:{c*YS}\nds_read_b32 v{R+4*c+1}, v{vT1} offset:{c*YS+4}\nds_read_b32 v{R+4*c+2}, v{vT1} offset:{c*YS+8}\nv_mov_b32 v{R+4*c+3}, s{sTAG}")
    for c in range(3):
        if c == 2: a(f"s_cmp_lt_u32 s{sNCH}, 3\ns_cbranch_scc1 {done}_x")
        a(f"s_waitcnt lgkmcnt({6-3*c})")
        a(f"buffer_store_dwordx4 {v4(R+4*c)}, v{vT0}, {s4(SRD_WS)}, s{(sT0, sT1, sT2)[c]} offen {SC}")
    a.label(f"{done}_x")
    a("s_waitcnt lgkmcnt(0)\ns_mov_b64 exec, -1")
    a.label(done)

cB1, cTW1, cA2, cTW2, cA4 = 64, 72, 80, 88, 96
def p2_consts():
    t = 124
    e, rn, pr, th, c, s, fr, fnn = t, t+1, t+2, t+3, t+4, t+5, t+6, t+7
    a(f"v_lshlrev_b32 v{e}, 2, v{vG}\nv_cvt_f32_u32 v{e}, v{e}")
    a(f"v_lshlrev_b32 v{rn}, 3, v{vN}\nv_add_u32 v{rn}, s{sR}, v{rn}\nv_cvt_f32_u32 v{rn}, v{rn}")
    a(f"v_cvt_f32_u32 v{fnn}, v{vN}\nv_cvt_f32_u32 v{fr}, s{sR}")
    for i in range(4):
        a(f"v_add_f32 v{pr}, {fl(i)}, v{e}")
        a(f"v_mul_f32 v{th}, v{pr}, v{fnn}\nv_mul_f32 v{th}, {fl(1/16)}, v{th}")
        sincos(s, c, th); cvtpk(cA2+i, f"v{c}", f"v{s}"); cvtpk(cA2+4+i, f"-v{s}", f"v{c}")
        a(f"v_mul_f32 v{th+8}, v{pr}, v{rn}\nv_mul_f32 v{th}, {fl(1/128)}, v{th+8}\nv_mul_f32 v{th+8}, {fl(1/2048)}, v{th+8}")
        sincos(s, c, th); sincos(cTW1+2*i+1, cTW1+2*i, th+8)
        cvtpk(cB1+i, f"v{c}", f"v{s}"); cvtpk(cB1+4+i, f"-v{s}", f"v{c}")
        a(f"v_fma_f32 v{pr}, v{pr}, {fl(8.0) if False else '4.0'}, v{pr}\nv_fma_f32 v{pr}, {'v%d' % pr}, 1.0, 0" if False else f"v_mul_f32 v{pr}, {fl(8)}, v{pr}\nv_add_f32 v{pr}, v{pr}, v{fr}")
        a(f"v_mul_f32 v{th+8}, v{pr}, v{fnn}\nv_mul_f32 v{th}, {fl(1/128)}, v{th+8}\nv_mul_f32 v{th+8}, {fl(1/2048)}, v{th+8}")
        sincos(s, c, th); sincos(cTW2+2*i+1, cTW2+2*i, th+8)
        cvtpk(cA4+i, f"v{c}", f"-v{s}"); cvtpk(cA4+4+i, f"v{s}", f"v{c}")

def z_poll():
    R = 124
    a(f"v_subrev_u32 v{vT0}, 256, v0\nv_lshrrev_b32 v{vT1}, 3, v{vT0}\nv_and_b32 v{vT2}, 7, v0")
    a(f"v_mul_u32_u24 v{vT0}, {ZS}, v{vT1}\nv_lshl_add_u32 v{vT0}, v{vT2}, 4, v{vT0}")
    a(f"v_and_b32 v{vT3}, 7, v{vT1}\nv_xor_b32 v{vT2}, v{vT2}, v{vT3}\nv_lshlrev_b32 v{vT2}, 4, v{vT2}\nv_lshl_add_u32 v{vT1}, v{vT1}, 7, v{vT2}\nv_add_u32 v{vT1}, {L_ZIN}, v{vT1}")
    a(f"s_lshl_b32 s{sT0}, s2, 7\ns_add_u32 s88, s{sT0}, {ZB}")
    for k in range(1, 8): a(f"s_add_u32 s{88+k}, s{88+k-1}, {32*ZS}")
    poll([f"buffer_load_dwordx4 {v4(R+4*k)}, v{vT0}, {s4(SRD_WS)}, s{88+k} offen {SC}" for k in range(8)], [R+4*k for k in range(8)])
    a("s_mov_b64 exec, -1")
    for k in range(8): a(f"ds_write_b128 v{vT1}, {v4(R+4*k)} offset:{4096*k}")

def p2():
    R = 124
    Wd = 140
    F = 156
    D = 168
    T = 192
    O = 216
    ad = vT0
    a(f"v_lshl_add_u32 v{ad}, v{vG}, 6, v{vN}\nv_and_b32 v{vT1}, 7, v{vN}\nv_xor_b32 v{vT1}, s{sWAVE}, v{vT1}\nv_lshlrev_b32 v{vT1}, 4, v{vT1}")
    a(f"s_lshl_b32 s{sT0}, s{sWAVE}, 12\ns_add_u32 s{sT0}, s{sT0}, {L_W}\nv_lshlrev_b32 v{vT2}, 4, v{ad}\nv_add_u32 v{vT2}, s{sT0}, v{vT2}")
    a(f"v_lshl_add_u32 v{ad}, v{ad}, 7, v{vT1}\nv_add_u32 v{ad}, {L_ZIN}, v{ad}")
    a("s_waitcnt lgkmcnt(0)\ns_barrier")
    stamp()
    for i in range(4): a(f"ds_read_b128 {v4(R+4*i)}, v{ad} offset:{2048*i}")
    for i in range(4): a(f"ds_read_b128 {v4(Wd+4*i)}, v{vT2} offset:{256*i}")
    l = newlab("noep")
    a(f"s_or_b32 s{sT0}, s2, s{sWAVE}\ns_cmp_lg_u32 s{sT0}, 0\ns_cbranch_scc1 {l}")
    a(f"v_mov_b32 v{vT3}, 0\nv_mov_b32 v{vT4}, s{sTAG}\ns_mov_b64 exec, 1\nbuffer_store_dword v{vT4}, v{vT3}, {s4(SRD_WS)}, 0 offen\ns_mov_b64 exec, -1")
    a.label(l)
    for i in range(4):
        a(f"s_waitcnt lgkmcnt({7-i})")
        for e in range(3): a(f"v_mov_b32 v{F+4*e+i}, v{R+4*i+e}")
    def mm(e, A_, B_, swap):
        pass
    MF = "v_mfma_f32_16x16x32_bf16"
    for e in range(3):
        a(f"{MF} {v4(D+8*e)}, {v4(F+4*e)}, {v4(cB1)}, 0\n{MF} {v4(D+8*e+4)}, {v4(F+4*e)}, {v4(cB1+4)}, 0")
    a("s_waitcnt lgkmcnt(0)\ns_barrier")
    for i in range(4): a(f"v_mov_b32 v{O+4*i+3}, s{sTAG}")
    def tw(e, tb, conj):
        for i in range(4):
            re, im, c, s, t = D+8*e+i, D+8*e+4+i, tb+2*i, tb+2*i+1, T+8*e+2*i
            a(f"v_mul_f32 v{t}, v{re}, v{c}\nv_mul_f32 v{t+1}, v{im}, v{c}")
            if conj: a(f"v_fma_f32 v{t}, -v{im}, v{s}, v{t}\nv_fmac_f32 v{t+1}, v{re}, v{s}")
            else: a(f"v_fmac_f32 v{t}, v{im}, v{s}\nv_fma_f32 v{t+1}, -v{re}, v{s}, v{t+1}")
        for i in range(4): cvtpk(F+4*e+i, f"v{T+8*e+2*i}", f"v{T+8*e+2*i+1}")
    for e in range(3):
        tw(e, cTW1, False)
        a(f"{MF} {v4(D+8*e)}, {v4(cA2)}, {v4(F+4*e)}, 0\n{MF} {v4(D+8*e+4)}, {v4(cA2+4)}, {v4(F+4*e)}, 0")
    for e in range(3):
        for i in range(4):
            re, im, t, w = D+8*e+i, D+8*e+4+i, T+8*e+2*i, Wd+4*i+e
            wr = R + 4*i + e
            a(f"v_lshlrev_b32 v{wr}, 16, v{w}\nv_and_b32 v{w}, 0xffff0000, v{w}")
            a(f"v_mul_f32 v{t}, v{re}, v{wr}\nv_mul_f32 v{t+1}, v{im}, v{wr}\nv_fma_f32 v{t}, -v{im}, v{w}, v{t}\nv_fmac_f32 v{t+1}, v{re}, v{w}")
        for i in range(4): cvtpk(F+4*e+i, f"v{T+8*e+2*i+1}", f"v{T+8*e+2*i}")
        a(f"{MF} {v4(D+8*e)}, {v4(F+4*e)}, {v4(cA2+4)}, 0\n{MF} {v4(D+8*e+4)}, {v4(F+4*e)}, {v4(cA2)}, 0")
    for e in range(3):
        tw(e, cTW2, True)
        a(f"{MF} {v4(D+8*e)}, {v4(cA4)}, {v4(F+4*e)}, 0\n{MF} {v4(D+8*e+4)}, {v4(cA4+4)}, {v4(F+4*e)}, 0")
    a(f"v_lshrrev_b32 v{vT1}, 3, v0\nv_and_b32 v{vT2}, 7, v0\nv_mul_u32_u24 v{vT3}, {ZS}, v{vT1}\nv_lshl_add_u32 v{vT3}, v{vT2}, 4, v{vT3}")
    a(f"v_and_b32 v{vT4}, 7, v{vT1}\nv_xor_b32 v{vT2}, v{vT2}, v{vT4}\nv_lshlrev_b32 v{vT2}, 4, v{vT2}\nv_lshl_add_u32 v{vT1}, v{vT1}, 7, v{vT2}\nv_add_u32 v{vT1}, {L_ZIN}, v{vT1}")
    a(f"s_lshl_b32 s{sT0}, s2, 7\ns_add_u32 s88, s{sT0}, {VB}")
    for k in range(1, 4): a(f"s_add_u32 s{88+k}, s{88+k-1}, {64*ZS}")
    for e in range(3):
        for i in range(4): cvtpk(O+4*i+e, f"v{D+8*e+i}", f"v{D+8*e+4+i}")
    for i in range(4): a(f"ds_write_b128 v{ad}, {v4(O+4*i)} offset:{2048*i}")
    a("s_waitcnt lgkmcnt(0)\ns_barrier")
    for k in range(4): a(f"ds_read_b128 {v4(O+4*k)}, v{vT1} offset:{8192*k}")
    for k in range(4):
        a(f"s_waitcnt lgkmcnt({3-k})\nbuffer_store_dwordx4 {v4(O+4*k)}, v{vT3}, {s4(SRD_WS)}, s{88+k} offen {SC}")
    stamp()

cF32, cT3, cF20 = 64, 80, 96
def p3_consts():
    t = 124
    e, fn_, th, c, s, d2, wt, a1, msk = [t+k for k in range(9)]
    a(f"v_lshlrev_b32 v{e}, 2, v{vG}\nv_cvt_f32_u32 v{e}, v{e}")
    a(f"s_and_b32 s{sT0}, s{sWAVE}, 1\ns_lshl_b32 s{sT0}, s{sT0}, 4\nv_add_u32 v{d2}, s{sT0}, v{vN}\nv_cvt_f32_u32 v{d2}, v{d2}")
    a(f"v_and_b32 v{msk}, 1, v{vN}\nv_sub_u32 v{msk}, 0, v{msk}\nv_and_b32 v{msk}, 0x80008000, v{msk}\nv_mul_f32 v{fn_}, {fl(1/32)}, v{d2}")
    for i in range(4):
        a(f"v_add_f32 v{th}, {fl(i)}, v{e}\nv_mul_f32 v{th}, v{th}, v{fn_}")
        sincos(s, c, th)
        cvtpk(cF32+i, f"v{c}", f"-v{s}"); cvtpk(cF32+4+i, f"v{s}", f"v{c}")
        a(f"v_xor_b32 v{cF32+8+i}, v{msk}, v{cF32+i}\nv_xor_b32 v{cF32+12+i}, v{msk}, v{cF32+4+i}")
    SCL = 1.0/(2048*640)
    lr, ld = newlab("p3r"), newlab("p3d")
    a(f"v_mul_f32 v{fn_}, {fl(1/640)}, v{d2}")
    a(f"s_cmp_lt_u32 s{sWAVE}, 2\ns_cbranch_scc1 {lr}")
    d1a, d1x = t+10, t+11
    for real in range(2):
        if real: a.label(lr)
        for mu in range(2):
            for i in range(4):
                k = 4*mu+i
                if real and mu == 1:
                    a(f"v_mov_b32 v{cT3+2*k}, v{cT3+2*i}\nv_mov_b32 v{cT3+2*k+1}, v{cT3+2*i+1}"); continue
                a(f"v_add_f32 v{th}, {fl(12*mu+i)}, v{e}\nv_mul_f32 v{th}, v{th}, v{fn_}")
                sincos(s, c, th)
                if not real: wl = [2, 2, 2, 0] if mu == 0 else [2, 2, 0, 0]
                else: wl = [[1, 2, 2, 0], [2, 2, 2, 0], [2, 2, 1, 0], [2, 2, 0, 0]][i]
                a(f"v_mov_b32 v{wt}, {fl(wl[0]*SCL)}")
                for g in range(1, 4):
                    if wl[g] != wl[g-1]:
                        a(f"v_mov_b32 v{a1}, {fl(wl[g]*SCL)}\nv_cmp_le_u32 vcc, {g}, v{vG}\nv_cndmask_b32 v{wt}, v{wt}, v{a1}, vcc")
                a(f"v_mul_f32 v{cT3+2*k}, v{c}, v{wt}\nv_mul_f32 v{cT3+2*k+1}, v{s}, v{wt}")
        a(f"v_cvt_f32_u32 v{d1a}, v{vN}\nv_mul_f32 v{d1a}, {fl(1/20)}, v{d1a}\nv_and_b32 v{d1x}, 3, v{vN}\nv_add_u32 v{d1x}, 16, v{d1x}\nv_cvt_f32_u32 v{d1x}, v{d1x}\nv_mul_f32 v{d1x}, {fl(1/20)}, v{d1x}")
        a(f"v_and_b32 v{wt}, 4, v{vN}\nv_cmp_ne_u32 vcc, 0, v{wt}")
        for mu in range(2):
            for i in range(4):
                if real and mu == 1:
                    a(f"v_mov_b32 v{cF20+12+i}, v{cF20+i}\nv_mov_b32 v{cF20+4+i}, 0\nv_mov_b32 v{cF20+8+i}, 0")
                    a(f"v_cndmask_b32 v{cF20+20+i}, 0, v{cF20+16+i}, vcc\nv_cndmask_b32 v{cF20+16+i}, v{cF20+16+i}, 0, vcc" if False else
                      f"v_cndmask_b32 v{cF20+20+i}, 0, v{cF20+16+i}, vcc\nv_xor_b32 v{cF20+16+i}, v{cF20+16+i}, v{cF20+20+i}")
                    continue
                a(f"v_add_f32 v{a1}, {fl(12*mu+i)}, v{e}\nv_mul_f32 v{th}, v{a1}, v{d1a}")
                sincos(s, c, th)
                cvtpk(cF20+4*mu+i, f"v{c}", f"-v{s}")
                if not real: cvtpk(cF20+8+4*mu+i, f"v{s}", f"v{c}")
                a(f"v_mul_f32 v{th}, v{a1}, v{d1x}")
                sincos(s, c, th)
                cvtpk(cF20+16+4*mu+i, f"v{c}", f"-v{s}")
                if not real:
                    cvtpk(th, f"v{s}", f"v{c}")
                    a(f"v_cndmask_b32 v{cF20+16+4*mu+i}, v{cF20+16+4*mu+i}, v{th}, vcc")
        if not real: a(f"s_branch {ld}")
    a.label(ld)

def p3():
    R = 124
    a(f"s_mul_i32 s{sT0}, s2, {ZS}\ns_add_u32 s{sT0}, s{sT0}, {VB}\ns_add_u32 s{sT1}, s{sT0}, 8192\nv_lshlrev_b32 v{vT0}, 4, v0")
    a(f"v_add_u32 v{vT1}, 8192, v{vT0}\nv_cmp_gt_u32 vcc, 416, v0\nv_cndmask_b32 v{vT1}, v{vT0}, v{vT1}, vcc")
    stamp()
    poll([f"buffer_load_dwordx4 {v4(R)}, v{vT0}, {s4(SRD_WS)}, s{sT0} offen {SC}", f"buffer_load_dwordx4 {v4(R+4)}, v{vT1}, {s4(SRD_WS)}, s{sT0} offen {SC}"], [R, R+4])
    a("s_mov_b64 exec, -1")
    stamp()
    a(f"v_mov_b32 v{vT2}, {L_NAT+10800}\nv_cmp_gt_u32 vcc, 416, v0\nv_cndmask_b32 v{vT2}, v{vT2}, v{vNATA+1}, vcc")
    for k, ad in enumerate((vNATA, vT2)):
        a(f"ds_write2_b32 v{ad}, v{R+4*k}, v{R+4*k+1} offset0:0 offset1:1\nds_write_b32 v{ad}, v{R+4*k+2} offset:8")
    A = 132
    lr, ld = newlab("p3gr"), newlab("p3gd")
    a(f"s_cmp_lt_u32 s{sWAVE}, 2\ns_cbranch_scc1 {lr}")
    a(f"s_lshr_b32 s{sT0}, s{sWAVE}, 1\ns_mul_i32 s{sT0}, s{sT0}, 2576\ns_add_u32 s{sT0}, s{sT0}, {L_NAT-2576}")
    a(f"v_mul_u32_u24 v{vT0}, 320, v{vG}\nv_add_u32 v{vT0}, s{sT0}, v{vT0}\nv_and_b32 v{vT1}, 7, v{vN}\nv_lshl_add_u32 v{vT1}, v{vT1}, 2, v{vT0}\nv_lshl_add_u32 v{vT0}, v{vN}, 2, v{vT0}")
    a("s_waitcnt lgkmcnt(0)\ns_barrier")
    for sg in range(2):
        for mu in range(2):
            for i in range(4):
                a(f"ds_read_b32 v{A+(mu*2+sg)*4+i}, v{vT0+mu} offset:{1280*sg+80*i+48*mu}")
    a(f"s_branch {ld}")
    a.label(lr)
    a(f"v_mul_u32_u24 v{vT0}, 192, v{vG}\nv_min_u32 v{vT1}, 11, v{vN}\nv_lshl_add_u32 v{vT0}, v{vT1}, 2, v{vT0}\nv_add_u32 v{vT0}, {L_NAT+7728}, v{vT0}")
    a("s_waitcnt lgkmcnt(0)\ns_barrier")
    for sg in range(2):
        for mu in range(2):
            for i in range(4):
                a(f"ds_read_b32 v{A+(mu*2+sg)*4+i}, v{vT0} offset:{768*sg+48*i+1536*mu}")
    a.label(ld)
    MF = "v_mfma_f32_16x16x32_bf16"
    D = 148; T = 164; F = 180; U = 188
    for sg in range(2):
        for mu in range(2):
            a(f"s_waitcnt lgkmcnt({12-8*sg-4*mu})")
            for part in range(2):
                d = D+(mu*2+part)*4
                a(f"{MF} {v4(d)}, {v4(A+(mu*2+sg)*4)}, {v4(cF32+8*sg+4*part)}, {'0' if sg == 0 else v4(d)}")
    a(f"s_lshr_b32 s{sT0}, s{sWAVE}, 1\ns_mul_i32 s{sT0}, s{sT0}, 5120\ns_add_u32 s{sT0}, s{sT0}, {L_PL}\ns_and_b32 s{sT1}, s{sWAVE}, 1\ns_lshl_b32 s{sT1}, s{sT1}, 2")
    a(f"v_add_u32 v{vT2}, s{sT1}, v{vG}\nv_and_b32 v{vT3}, 7, v{vN}\nv_xor_b32 v{vT3}, v{vT3}, v{vT2}\nv_lshlrev_b32 v{vT3}, 4, v{vT3}\nv_lshl_add_u32 v{vT0}, v{vN}, 7, v{vT3}\nv_add_u32 v{vT0}, s{sT0}, v{vT0}")
    a(f"v_and_b32 v{vT3}, 3, v{vN}\nv_xor_b32 v{vT2}, v{vT3}, v{vT2}\nv_lshlrev_b32 v{vT2}, 4, v{vT2}\nv_lshl_add_u32 v{vT1}, v{vT3}, 7, v{vT2}\nv_bfe_u32 v{vT3}, v{vN}, 2, 1\nv_mul_u32_u24 v{vT3}, 2560, v{vT3}\nv_add3_u32 v{vT1}, v{vT1}, v{vT3}, s{sT0}")
    for mu in range(2):
        for i in range(4):
            re, im, c, s, t = D+(mu*2)*4+i, D+(mu*2+1)*4+i, cT3+2*(4*mu+i), cT3+2*(4*mu+i)+1, T+8*mu+2*i
            a(f"v_mul_f32 v{t}, v{re}, v{c}\nv_mul_f32 v{t+1}, v{im}, v{c}\nv_fma_f32 v{t}, -v{im}, v{s}, v{t}\nv_fmac_f32 v{t+1}, v{re}, v{s}")
        for i in range(4): cvtpk(F+4*mu+i, f"v{T+8*mu+2*i}", f"v{T+8*mu+2*i+1}")
    for mu in range(2):
        for tile in range(3):
            d = U+4*tile
            a(f"{MF} {v4(d)}, {v4(F+4*mu)}, {v4(cF20+(tile*2+mu)*4)}, {'0' if mu == 0 else v4(d)}")
    a(f"v_lshrrev_b32 v{vT2}, 4, v0\nv_bfe_u32 v{vT3}, v0, 1, 3\nv_and_b32 v{vT4}, 7, v{vT2}\nv_xor_b32 v{vT3}, v{vT3}, v{vT4}\nv_lshlrev_b32 v{vT3}, 4, v{vT3}\nv_lshl_add_u32 v{vT2}, v{vT2}, 7, v{vT3}\nv_and_b32 v{vT3}, 1, v0\nv_lshl_add_u32 v{vT2}, v{vT3}, 3, v{vT2}")
    a(f"v_lshlrev_b32 v{vT3}, 2, v0\ns_mul_i32 s88, s2, 2560")
    for k in range(1, 8): a(f"s_add_u32 s{88+k}, s{88+k-1}, {256*2560}")
    a(f"ds_write_b128 v{vT0}, {v4(U)}\nds_write_b128 v{vT0}, {v4(U+4)} offset:2560")
    a(f"s_mov_b32 exec_lo, 0x00ff00ff\ns_mov_b32 exec_hi, 0x00ff00ff\nds_write_b128 v{vT1}, {v4(U+8)} offset:2048\ns_mov_b64 exec, -1")
    a("s_waitcnt lgkmcnt(0)\ns_barrier")
    done = newlab("p3e")
    a(f"s_cmp_ge_u32 s{sWAVE}, 5\ns_cbranch_scc1 {done}")
    P = 132
    for pl in range(8): a(f"ds_read_b64 {v2(P+2*pl)}, v{vT2} offset:{L_PL+2560*pl}")
    U0, U4, p1, q1, p2_, q2, p3_, q3 = [P+2*k for k in range(8)]
    X = 148
    A_, B_, e0, e2, o1, o3, t0, t2, f_, g_, h1, h3 = [X+2*k for k in range(12)]
    Y = 172
    def pk(op, d, x, y, neg=False): a(f"v_pk_add_f32 {v2(d)}, {v2(x)}, {v2(y)}" + (" neg_lo:[0,1] neg_hi:[0,1]" if neg else ""))
    a(f"s_mov_b32 s96, {fl(math.sqrt(0.5))}\ns_mov_b32 s97, {fl(math.sqrt(0.5))}")
    a("s_waitcnt lgkmcnt(6)"); pk(0, A_, U0, U4); pk(0, B_, U0, U4, True)
    a("s_waitcnt lgkmcnt(2)"); pk(0, e0, A_, p2_); pk(0, e2, A_, p2_, True); pk(0, o1, B_, q2, True); pk(0, o3, B_, q2)
    a("s_waitcnt lgkmcnt(0)"); pk(0, t0, p1, p3_); pk(0, t2, q3, q1, True); pk(0, f_, p1, p3_, True); pk(0, g_, q1, q3)
    pk(0, h1, f_, g_, True); pk(0, h3, f_, g_)
    pk(0, Y+0, e0, t0); pk(0, Y+8, e0, t0, True); pk(0, Y+4, e2, t2); pk(0, Y+12, e2, t2, True)
    a(f"v_pk_fma_f32 {v2(Y+2)}, {v2(h1)}, s[96:97], {v2(o1)}\nv_pk_fma_f32 {v2(Y+10)}, {v2(h1)}, s[96:97], {v2(o1)} neg_lo:[1,0,0] neg_hi:[1,0,0]")
    a(f"v_pk_fma_f32 {v2(Y+6)}, {v2(h3)}, s[96:97], {v2(o3)} neg_lo:[1,0,0] neg_hi:[1,0,0]\nv_pk_fma_f32 {v2(Y+14)}, {v2(h3)}, s[96:97], {v2(o3)}")
    for s1 in range(8):
        cvtpk(Y+2*s1, f"v{Y+2*s1}", f"v{Y+2*s1+1}")
        a(f"buffer_store_dword v{Y+2*s1}, v{vT3}, {s4(SRD_OUT)}, s{88+s1} offen")
    a.label(done)
    stamp()

def t2():
    R = 124
    done = newlab("t2d")
    a(f"s_cmp_ge_u32 s2, 220\ns_cbranch_scc1 {done}")
    a(f"s_mov_b32 s{sT0}, {YTB}\ns_mov_b32 s{sT1}, {YTB+32*CS_}")
    a(f"v_mul_u32_u24 v{vT0}, 768, v{vN}\nv_lshrrev_b32 v{vT1}, 7, v0\nv_and_b32 v{vT2}, 7, v{vN}\nv_xor_b32 v{vT1}, v{vT1}, v{vT2}\nv_lshl_add_u32 v{vT0}, v{vT1}, 4, v{vT0}\nv_bfe_u32 v{vT1}, v0, 4, 3\nv_lshl_add_u32 v{vT0}, v{vT1}, 1, v{vT0}\nv_add_u32 v{vT0}, {L_T2}, v{vT0}\nv_xor_b32 v{vT1}, 64, v{vT0}")
    for k in range(2):
        a(f"v_lshrrev_b32 v{vT4}, 3, v0")
        if k: a(f"v_add_u32 v{vT4}, 64, v{vT4}")
        a(f"v_mul_u32_u24 v{vT5}, 43, v{vT4}\nv_bfe_u32 v{vT5}, v{vT5}, 8, 3\nv_and_b32 v{R+8}, 7, v0\nv_xor_b32 v{vT5}, v{vT5}, v{R+8}\nv_lshlrev_b32 v{vT5}, 4, v{vT5}\nv_lshl_add_u32 v{vT2+k}, v{vT4}, 7, v{vT5}\nv_add_u32 v{vT2+k}, {L_T2}, v{vT2+k}")
    a(f"v_lshrrev_b32 v{vT4}, 3, v0\nv_mul_u32_u24 v{vT4}, 2560, v{vT4}\nv_lshl_add_u32 v{vT4}, v{R+8}, 4, v{vT4}")
    a(f"s_mul_i32 s{sT2}, s{sTB}, {96*2560}\ns_lshl_b32 s{sT3}, s{sCG}, 7\ns_add_u32 s{sT2}, s{sT2}, s{sT3}\ns_add_u32 s{sT2}, s{sT2}, 1280\ns_add_u32 s{sT3}, s{sT2}, {64*2560}")
    a(f"v_cmp_gt_u32 vcc, 0x40000000, v{vUTO}\ns_and_saveexec_b64 {sp(sEX)}, vcc\ns_mov_b64 {sp(sEX)}, exec")
    poll([f"buffer_load_dwordx4 {v4(R)}, v{vUTO}, {s4(SRD_WS)}, s{sT0} offen {SC}", f"buffer_load_dwordx4 {v4(R+4)}, v{vUTO}, {s4(SRD_WS)}, s{sT1} offen {SC}"], [R, R+4])
    a(f"s_mov_b64 exec, {sp(sEX)}")
    stamp()
    for k in range(2):
        for r in range(6):
            a(f"ds_write_b16{'_d16_hi' if r & 1 else ''} v{vT0+k}, v{R+4*k+r//2} offset:{128*r}")
    a("s_mov_b64 exec, -1\ns_waitcnt lgkmcnt(0)\ns_barrier")
    a(f"ds_read_b128 {v4(R)}, v{vT2}\nds_read_b128 {v4(R+4)}, v{vT3}\ns_waitcnt lgkmcnt(1)")
    a(f"buffer_store_dwordx4 {v4(R)}, v{vT4}, {s4(SRD_OUT)}, s{sT2} offen")
    a(f"s_cmp_ge_u32 s{sWAVE}, 4\ns_cbranch_scc1 {done}\ns_waitcnt lgkmcnt(0)")
    a(f"buffer_store_dwordx4 {v4(R+4)}, v{vT4}, {s4(SRD_OUT)}, s{sT3} offen")
    a.label(done)

def dump_lds(lo, nbytes):
    if "--dumpk" not in sys.argv: return
    a(f"s_mul_i32 s{sT0}, s2, {0x40000}\ns_add_u32 s{sT0}, s{sT0}, {KDUMP}\nv_lshlrev_b32 v{vT0}, 4, v0\nv_add_u32 v{vT1}, {lo}, v{vT0}")
    for k in range(nbytes//8192):
        a(f"ds_read_b128 v[240:243], v{vT1}\ns_waitcnt lgkmcnt(0)\nbuffer_store_dwordx4 v[240:243], v{vT1}, {s4(SRD_WS)}, s{sT0} offen\ns_waitcnt vmcnt(0)\nv_add_u32 v{vT1}, 8192, v{vT1}")
    a("s_barrier")
def main():
    prologue()
    p1_consts()
    misc_addrs()
    kd_zero()
    unit_params()
    dt_compute()
    stamp()
    a("s_waitcnt vmcnt(4)")
    stamp()
    kgen_rows([0, 1])
    stamp()
    t1_p1()
    L3, LJ, LJ2 = newlab("nch3"), newlab("join"), newlab("join2")
    a(f"s_cmp_ge_u32 s2, 116\ns_cbranch_scc1 {L3}")
    w_issue()
    p2_consts()
    a(f"s_branch {LJ}")
    a.label(L3)
    kgen_rows([2])
    a.label(LJ)
    a("s_waitcnt lgkmcnt(0)\ns_barrier")
    stamp()
    if "--dumpt" in sys.argv:
        sys.argv.append("--dumpk"); dump_lds(0, 98304); sys.argv.remove("--dumpk")
    k_mfma()
    a("s_waitcnt lgkmcnt(0)\ns_barrier")
    LN = newlab("noconv")
    a(f"s_cmp_eq_u32 s{sNCH}, 0\ns_cbranch_scc1 {LN}")
    expand()
    stamp()
    ut_poll()
    stamp()
    L3b = newlab("nch3b")
    a(f"s_cmp_ge_u32 s2, 116\ns_cbranch_scc1 {L3b}")
    a("s_waitcnt vmcnt(0)")
    w_stage()
    a("s_waitcnt lgkmcnt(0)\ns_barrier")
    lz, lp = newlab("zp"), newlab("p2")
    a(f"s_cmp_ge_u32 s{sWAVE}, 4\ns_cbranch_scc1 {lz}")
    conv2(0)
    a(f"s_branch {lp}")
    a.label(lz)
    z_poll()
    a.label(lp)
    p2()
    lq = newlab("c2skip")
    a(f"s_cmp_ge_u32 s{sWAVE}, 4\ns_cbranch_scc1 {lq}")
    conv2(1)
    a.label(lq)
    a(f"s_branch {LJ2}")
    a.label(L3b)
    a("s_waitcnt lgkmcnt(0)\ns_barrier")
    dump_lds(0, 65536); dump_lds(131072, 16384)
    conv3()
    a.label(LJ2)
    a("s_waitcnt lgkmcnt(0)\ns_barrier")
    stamp()
    yt_store()
    a.label(LN)
    p3_consts()
    p3()
    t2()
    if DEBUG:
        a("s_waitcnt vmcnt(0)")
        stamp()
        a(f"s_lshl_b32 s{sT0}, s2, 11\ns_add_u32 s{sT0}, s{sT0}, {STAMPB}\nv_lshlrev_b32 v{vT0}, 2, v0")
        a(f"buffer_store_dword v{vSTAMP}, v{vT0}, {s4(SRD_WS)}, s{sT0} offen")
    a.label("L_end")
    a("s_endpgm")

main()
body = a.finalize()
hdr = open("concat_heads__spectral_gfnet__ssm_conv_s4__prompt.s.ref").read().split("; Override")[0]
out = hdr + f"; @launch grid=(256,1,1) block=(512,1,1) lds={LDS_TOTAL}\n"
out += f""".amdgcn_target "amdgcn-amd-amdhsa--gfx950"
.text
.globl {NAME}
.p2align 8
.type {NAME},@function
""" + body + f""".section .rodata,"a"
.p2align 6
.amdhsa_kernel {NAME}
  .amdhsa_next_free_vgpr 256
  .amdhsa_next_free_sgpr 102
  .amdhsa_accum_offset 256
  .amdhsa_group_segment_fixed_size 0
  .amdhsa_kernarg_size 120
  .amdhsa_user_sgpr_count 2
  .amdhsa_user_sgpr_kernarg_segment_ptr 1
  .amdhsa_system_sgpr_workgroup_id_x 1
.end_amdhsa_kernel
"""
fn = [x for x in sys.argv[1:] if not x.startswith("--")][0]
open(fn, "w").write(out)
print("wrote", fn, "lines", body.count("\n"), "nops", a.nnop, "stamps", nstamp[0])
```
